```python
import torch

def _softmax(x, axis=-1):
    return torch.softmax(x, dim=axis)

def _gelu(x):
    return torch.nn.functional.gelu(x, approximate='tanh')

def _silu(x):
    return torch.nn.functional.silu(x)

def _sigmoid(x):
    return torch.sigmoid(x)

def _layernorm(x, axis=-1, eps=1e-05):
    m = x.mean(dim=axis, keepdim=True)
    v = x.var(dim=axis, keepdim=True, unbiased=False)
    return (x - m) / torch.sqrt(v + eps)

def _scatter_add(tgt, idx, src, axis=0):
    return tgt.clone().index_add_(axis, idx, src)

def _segment_sum(src, seg, n):
    out = torch.zeros((n,) + src.shape[1:], dtype=src.dtype)
    return out.index_add_(0, seg, src)

def _pad(x, pw):
    flat = tuple((v for pair in reversed(pw) for v in pair))
    return torch.nn.functional.pad(x, flat)
kernel_name = 'interleave_layers__spectral_fnet__mixer_gmlp__prompt'

def setup_inputs():

    _w = lambda a: (lambda t: t.to(torch.bfloat16) if t.is_floating_point() else t)(torch.as_tensor(a))

    def _A_setup():
        B, S, D = (1, 2048, 576)
        ns = torch.arange(S)[:, None] * torch.arange(S)[None, :]
        nd = torch.arange(D)[:, None] * torch.arange(D)[None, :]
        Ws_re = torch.cos(-2.0 * torch.pi * ns / S).to(float)
        Ws_im = torch.sin(-2.0 * torch.pi * ns / S).to(float)
        Wd_re = torch.cos(-2.0 * torch.pi * nd / D).to(float)
        Wd_im = torch.sin(-2.0 * torch.pi * nd / D).to(float)
        return {'x': _w((lambda *s: torch.randn(*s, dtype=torch.bfloat16) * 0.05)(B, S, D)), 'dft_seq_re': _w(Ws_re), 'dft_seq_im': _w(Ws_im), 'dft_hid_re': _w(Wd_re), 'dft_hid_im': _w(Wd_im)}
    _A_in = _A_setup()

    def _B_setup():
        B, S, D, F = (1, 2048, 576, 4608)
        Fh = F // 2
        return {'x': _w((lambda *s: torch.randn(*s, dtype=torch.bfloat16) * 0.05)(B, S, D)), 'w_in': _w((lambda *s: torch.randn(*s, dtype=torch.bfloat16) * 1.6)(D, 2 * Fh)), 'w_sp': _w(0.01 * (lambda *s: torch.randn(*s, dtype=torch.bfloat16) * 1.6)(S, S)), 'b_sp': _w(1.0 + 0.01 * (lambda *s: torch.randn(*s, dtype=torch.bfloat16) * 1.6)(S)), 'w_out': _w((lambda *s: torch.randn(*s, dtype=torch.bfloat16) * 1.6)(Fh, D))}
    _B_in = _B_setup()
    return {'A_x': _A_in['x'], 'A_dft_seq_re': _A_in['dft_seq_re'], 'A_dft_seq_im': _A_in['dft_seq_im'], 'A_dft_hid_re': _A_in['dft_hid_re'], 'A_dft_hid_im': _A_in['dft_hid_im'], 'B_x': _B_in['x'], 'B_w_in': _B_in['w_in'], 'B_w_sp': _B_in['w_sp'], 'B_b_sp': _B_in['b_sp'], 'B_w_out': _B_in['w_out']}

def reference(A_x, A_dft_seq_re, A_dft_seq_im, A_dft_hid_re, A_dft_hid_im, B_x, B_w_in, B_w_sp, B_b_sp, B_w_out):

    def _A_ref(x, dft_seq_re, dft_seq_im, dft_hid_re, dft_hid_im):
        a = torch.einsum('bsd,ed->bse', x, dft_hid_re)
        b = torch.einsum('bsd,ed->bse', x, dft_hid_im)
        y = torch.einsum('ts,bse->bte', dft_seq_re, a) - torch.einsum('ts,bse->bte', dft_seq_im, b)
        return y

    def _B_ref(x, w_in, w_sp, b_sp, w_out):
        B, S, D = x.shape
        F = w_in.shape[-1]
        Fh = F // 2
        z = _gelu(torch.einsum('bsd,df->bsf', x, w_in))
        z1 = z[..., :Fh].clone()
        z2 = _layernorm(z[..., Fh:], axis=-1)
        g = torch.einsum('ts,bsf->btf', w_sp, z2) + b_sp[None, :, None]
        return torch.einsum('bsf,fd->bsd', z1 * g, w_out)
    x = A_x
    x = x + _A_ref(_layernorm(x, axis=-1), A_dft_seq_re, A_dft_seq_im, A_dft_hid_re, A_dft_hid_im)
    x = x + _B_ref(_layernorm(x, axis=-1), B_w_in, B_w_sp, B_b_sp, B_w_out)
    x = x + _A_ref(_layernorm(x, axis=-1), A_dft_seq_re, A_dft_seq_im, A_dft_hid_re, A_dft_hid_im)
    x = x + _B_ref(_layernorm(x, axis=-1), B_w_in, B_w_sp, B_b_sp, B_w_out)
    return x
```

```python
import re


def v(a, n=1): return f"v{a}" if n == 1 else f"v[{a}:{a+n-1}]"
def a(x, n=1): return f"a{x}" if n == 1 else f"a[{x}:{x+n-1}]"
def s(x, n=1): return f"s{x}" if n == 1 else f"s[{x}:{x+n-1}]"


_REG = re.compile(r"^-?\|?([vas])(?:(\d+)|\[(\d+):(\d+)\])\|?$")
TRANS = ("v_exp_f32", "v_log_f32", "v_rcp_f32", "v_rsq_f32", "v_sqrt_f32", "v_sin_f32", "v_cos_f32")


def regs_of(op):
    op = op.strip()
    if op == "vcc": return {("s", 106), ("s", 107)}
    if op == "exec": return {("s", 126), ("s", 127)}
    if op == "m0": return {("s", 124)}
    m = _REG.match(op)
    if not m: return set()
    k = m.group(1)
    if m.group(2) is not None: return {(k, int(m.group(2)))}
    return {(k, i) for i in range(int(m.group(3)), int(m.group(4)) + 1)}


class Ins:
    __slots__ = ("text", "mn", "cls", "dst", "src", "srcC", "dpp", "nop", "wide_store", "data", "lds", "label", "branch")

    def __init__(self, text):
        self.text = text
        self.label = text.endswith(":")
        self.dst = set(); self.src = set(); self.srcC = set(); self.data = set()
        self.dpp = False; self.nop = 1; self.wide_store = False; self.lds = False; self.branch = False
        self.mn = ""; self.cls = "other"
        if self.label or text.startswith(".") or text.startswith(";"):
            self.nop = 0
            return
        body = text.split(";")[0].strip()
        parts = body.split(None, 1)
        mn = self.mn = parts[0]
        rest = parts[1] if len(parts) > 1 else ""
        ops, cur, depth = [], "", 0
        for ch in rest:
            if ch in "[(": depth += 1
            if ch in "])": depth -= 1
            if ch == "," and depth == 0:
                ops.append(cur.strip()); cur = ""
            else:
                cur += ch
        if cur.strip(): ops.append(cur.strip())
        mods = ""
        if ops:
            last = ops[-1].split(None, 1)
            ops[-1] = last[0]
            mods = last[1] if len(last) > 1 else ""
        R = [regs_of(o) for o in ops]
        U = lambda xs: set().union(*xs) if xs else set()
        if mn == "s_nop":
            self.nop = int(ops[0]) + 1
        elif mn.startswith("v_mfma"):
            self.cls = "mfma"; self.dst = R[0]; self.src = R[1] | R[2]; self.srcC = R[3]
        elif mn.startswith("v_"):
            self.cls = "valu"
            base = mn.replace("_e32", "").replace("_e64", "").replace("_dpp", "")
            self.dpp = mn.endswith("_dpp")
            if base.startswith("v_permlane"):
                self.dst = R[0] | R[1]; self.src = R[0] | R[1]
            elif base in ("v_add_co_u32", "v_addc_co_u32", "v_sub_co_u32"):
                self.dst = R[0] | R[1]; self.src = U(R[2:])
            else:
                self.dst = R[0]; self.src = U(R[1:])
                if base.startswith(("v_fmac", "v_dot2c")) or self.dpp: self.src = self.src | R[0]
            if base in TRANS: self.cls = "trans"
            if base.startswith("v_dot2"): self.cls = "dot"
        elif mn.startswith("buffer_") or mn.startswith("global_"):
            self.cls = "vmem"
            self.lds = " lds" in (" " + mods)
            if "load" in mn and not self.lds:
                self.dst = R[0]; self.src = U(R[1:])
            elif "load" in mn:
                self.src = U(R) | {("s", 124)}
            elif "store" in mn:
                self.src = U(R); self.data = R[0]
                self.wide_store = mn.endswith(("x3", "x4"))
            elif "atomic" in mn:
                self.src = U(R)
                if "sc0" in mods: self.dst = R[0]
        elif mn.startswith("ds_"):
            self.cls = "ds"
            if mn.startswith(("ds_read", "ds_bpermute", "ds_swizzle")):
                self.dst = R[0]; self.src = U(R[1:])
            else:
                self.src = U(R)
        elif mn.startswith("s_"):
            self.cls = "salu"
            if mn.startswith(("s_cbranch", "s_branch")):
                self.branch = True
            elif mn.startswith(("s_cmp", "s_bitcmp", "s_waitcnt", "s_barrier", "s_sleep", "s_setprio", "s_endpgm")):
                self.src = U(R)
            elif R:
                self.dst = R[0]; self.src = U(R[1:])


VALU = ("valu", "trans", "dot")


def need(p, c):
    n = 0
    pv = p.cls in VALU
    cv = c.cls in VALU
    vec = lambda x: {r for r in x if r[0] != "s"}
    sca = lambda x: {r for r in x if r[0] == "s"}
    if pv:
        if c.cls == "mfma" and vec(p.dst) & (c.src | c.srcC): n = max(n, 2)
        if cv and c.dpp and vec(p.dst) & c.src: n = max(n, 2)
        if c.mn.startswith("v_permlane") and vec(p.dst) & c.src: n = max(n, 2)
        if c.mn.startswith(("v_readlane", "v_readfirstlane")) and vec(p.dst) & c.src: n = max(n, 1)
        if sca(p.dst):
            if cv and sca(p.dst) & c.src: n = max(n, 2)
            if c.mn.startswith("v_cndmask") and ("s", 106) in p.dst: n = max(n, 2)
            if c.cls == "vmem" and sca(p.dst) & c.src: n = max(n, 5)
            if c.cls == "salu" and (sca(p.dst) & c.src or (c.branch and "vcc" in c.mn)): n = max(n, 1)
        if p.cls == "trans" and (cv or c.cls in ("vmem", "ds")) and p.dst & c.src: n = max(n, 1)
        if p.cls == "dot" and p.dst & (c.src | c.dst | c.srcC):
            same_acc = c.mn == p.mn and c.dst == p.dst
            if not same_acc: n = max(n, 3)
    if p.cls == "mfma":
        if c.cls == "mfma":
            if p.dst & c.src: n = max(n, 8)
            if p.dst & c.srcC and p.dst != c.srcC: n = max(n, 6)
            if p.dst & c.dst and p.dst != c.srcC: n = max(n, 8)
        elif cv or c.cls in ("vmem", "ds"):
            if p.dst & (c.src | c.dst): n = max(n, 8)
            if p.srcC & c.dst: n = max(n, 3)
    if p.wide_store and p.data & c.dst: n = max(n, 2)
    if p.cls == "salu" and ("s", 124) in p.dst and c.cls == "vmem" and c.lds: n = max(n, 1)
    return n


def pad_hazards(lines):
    ins = [Ins(t) for t in lines]
    out = []
    tails = {}
    inserted = 0

    def window(seq):
        w, dist = [], 0
        for p in reversed(seq):
            if dist >= 9: break
            if p.nop: w.append((p, dist)); dist += p.nop
        return w

    extra = []
    for c in ins:
        if c.label:
            for w in tails.get(c.text[:-1], []): extra.append([w, 0])
            out.append(c); continue
        if c.nop == 0:
            out.append(c); continue
        req = 0
        for p, dist in window(out):
            req = max(req, need(p, c) - dist)
        for w, trav in extra:
            for p, dist in w:
                req = max(req, need(p, c) - dist - trav)
        if req > 0:
            out.append(Ins(f"s_nop {req-1}")); inserted += 1
            for e in extra: e[1] += req
        out.append(c)
        for e in extra: e[1] += c.nop
        extra = [e for e in extra if e[1] < 9]
        if c.branch:
            tgt = c.text.split()[-1]
            tails.setdefault(tgt, []).append(window(out))
    return [i.text for i in out], inserted


class Gen:
    def __init__(self):
        self.l = []
        self.vq = []
        self.lq = []
        self.nlabel = 0
        self.issued = {}

    def __call__(self, text):
        for line in text.split("\n"):
            line = line.strip()
            if line: self.l.append(line)

    def label(self, base):
        self.nlabel += 1
        return f"L{base}{self.nlabel}"

    def vm(self, tag, text):
        self(text); self.vq.append(tag)
        self.issued[tag] = self.issued.get(tag, 0) + 1

    def ds(self, tag, text):
        self(text); self.lq.append(tag)

    @staticmethod
    def _cnt(q, tags):
        if not isinstance(tags, (list, set)): tags = [tags]
        idx = [i for i, t in enumerate(q) if t in tags]
        if not idx: return None
        n = len(q) - 1 - max(idx)
        del q[:max(idx) + 1]
        return n

    def wait(self, vm=None, lg=None):
        parts = []
        if vm is not None:
            if vm == "all": n = 0; self.vq.clear()
            else: n = self._cnt(self.vq, vm)
            if n is not None: parts.append(f"vmcnt({min(n, 63)})")
        if lg is not None:
            if lg == "all": n = 0; self.lq.clear()
            else: n = self._cnt(self.lq, lg)
            if n is not None: parts.append(f"lgkmcnt({min(n, 15)})")
        if parts: self("s_waitcnt " + " ".join(parts))

    def text(self):
        lines, n = pad_hazards(self.l)
        self.nops = n
        return "\n".join(lines) + "\n"
```

```python
import sys, struct, math
sys.path.insert(0, "gen")
from glib import *

NAME = "interleave_layers__spectral_fnet__mixer_gmlp__prompt_kernel"
KB = 1024
MB = 1 << 20
WF = 0
CSP = 16 * 324 * KB
WSF = 6 * MB
WOF = 14 * MB
WOX = WOF + 2359296
X2 = 17 * MB
STAMP = 20 * MB
LAY0 = 22 * MB
LSTR = 25 * MB
UF = 0
XF = 2359296
XST = 2 * 2359296
ZST = XST + 294912
CNT = ZST + 262144
ZF = CNT + 65536
UUF = ZF + 9437184
assert UUF + 9437184 <= LSTR
C_S1, C_S2, C_S4, C_S5, C_S6, C_SP = 0, 96, 112, 128, 144, 176
CL = 256
SLOT = 36864
L_CS = 4 * SLOT
L_RST = L_CS + 1280
L_SCR = L_RST + 256
LDS_BYTES = 160 * KB
WS, XIN, XOUT, TMP, WL = "s[4:7]", "s[8:11]", "s[12:15]", "s[16:19]", "s[20:23]"
sW, sHB, sG, sR, sFB, sL = "s24", "s25", "s26", "s27", "s28", "s29"
sRA, sH = "s30", "s31"
EPS = 1e-5


def fl(x): return "0x%08x" % struct.unpack("<I", struct.pack("<f", x))[0]


class Cfg:
    stop = 99
    stop_layer = 1
    diag = False
    xmap = 2
    P1 = 28
    P2 = 64
    NWO = 64
    G1 = 4
    GZ = 4
    sigpos = 10
    zstpos = 9


def MF(d, A, B, C): return f"v_mfma_f32_16x16x32_bf16 {d}, {A}, {B}, {C}"


class Fill:
    def __init__(self): self.q = []
    def add(self, cost, fn): self.q.append((cost, fn))
    def txt(self, k, text):
        for line in text.split("\n"):
            line = line.strip()
            if line: self.add(2 if line.startswith(TRANS) else 1, (lambda t=line: k(t)))
    def flush(self):
        while self.q: self.q.pop(0)[1]()


def weave(k, mf, fills, budget=2):
    for m in mf:
        k(m)
        left = budget
        while left > 0:
            f = next((f for f in fills if f.q), None)
            if f is None: break
            c, fn = f.q[0]
            if c > left and left < budget:
                f2 = next((g for g in fills if g.q and g is not f and g.q[0][0] <= left), None)
                if f2 is None: break
                f = f2; c, fn = f.q[0]
            f.q.pop(0); fn(); left -= c


def build(cfg):
    k = Gen()

    def srd(reg, lo, hi, size, add=0):
        if add:
            k(f"s_add_u32 s{reg}, s{lo}, {add}\ns_addc_u32 s{reg+1}, s{hi}, 0")
        else:
            k(f"s_mov_b32 s{reg}, s{lo}\ns_mov_b32 s{reg+1}, s{hi}")
        k(f"s_mov_b32 s{reg+2}, {size}\ns_mov_b32 s{reg+3}, 0x20000")

    def stamp(n):
        if not cfg.diag: return
        k(f"s_memrealtime s[58:59]\ns_lshl_b32 s57, {sL}, 5\ns_add_u32 s57, s57, {n}\ns_mov_b32 s88, m0\ns_waitcnt lgkmcnt(0)\ns_mov_b32 m0, s57\nv_writelane_b32 v9, s58, m0\ns_mov_b32 m0, s88")
        k.lq.clear()

    def stop(n):
        if cfg.stop == n:
            k(f"s_cmp_eq_u32 {sL}, {cfg.stop_layer}\ns_cbranch_scc1 Lfin")

    def signal(soff, mask, va, vt):
        k(f"s_mov_b64 exec, {mask}\nv_mov_b32 v{vt}, 1\nbuffer_atomic_add v{vt}, v{va}, {WL}, {soff} offen sc1\ns_mov_b64 exec, -1")

    def poll(soff, mask, va, vt, target):
        lp, ld = k.label("p"), k.label("pd")
        k(f"""s_mov_b64 exec, {mask}
        s_mov_b32 s56, 0
        {lp}:
        v_mov_b32 v{vt}, 0
        buffer_atomic_add v{vt}, v{va}, {WL}, {soff} offen sc0 sc1
        s_add_u32 s56, s56, 1
        s_waitcnt vmcnt(0)
        v_cmp_ne_u32 vcc, {target}, v{vt}
        s_cbranch_vccz {ld}
        s_cmp_lt_u32 s56, 0x8000
        s_cbranch_scc1 {lp}
        {ld}:
        s_mov_b64 exec, -1""")

    def gate(va, vt):
        lp, ld = k.label("g"), k.label("gd")
        srd(16, 42, 43, 256)
        k(f"""s_mov_b64 exec, 1
        s_mov_b32 s56, 0
        v_mov_b32 v{va}, 0
        {lp}:
        buffer_load_dword v{vt}, v{va}, {TMP}, 0 offen sc1
        s_add_u32 s56, s56, 1
        s_waitcnt vmcnt(0)
        v_cmp_ne_u32 vcc, 1, v{vt}
        s_cbranch_vccz {ld}
        s_cmp_lt_u32 s56, 0x8000
        s_cbranch_scc1 {lp}
        {ld}:
        s_mov_b64 exec, -1""")

    def red4(x):
        k(f"""v_permlane32_swap_b32 v{x[0]}, v{x[2]}
        v_permlane32_swap_b32 v{x[1]}, v{x[3]}
        v_add_f32 v{x[0]}, v{x[0]}, v{x[2]}
        v_add_f32 v{x[1]}, v{x[1]}, v{x[3]}
        v_permlane16_swap_b32 v{x[0]}, v{x[1]}
        v_add_f32 v{x[0]}, v{x[0]}, v{x[1]}""")

    VOFF = ["v1", "v2", "v3"]
    LB = ["v1", "v6", "v7", "v8"]

    def dma_run(tag, srdn, sbase, src_off, lds_s, lds_off, n, fill=None, aux=""):
        for i in range(n):
            pre = []
            if i % 12 == 0: pre.append(f"s_add_u32 s60, {sbase}, {src_off + i*KB}")
            if i % 4 == 0: pre.append(f"s_add_u32 m0, {lds_s}, {lds_off + i*KB}")
            t = f"buffer_load_dwordx4 {VOFF[(i % 12)//4]}, {srdn}, s60 offen offset:{(i % 4)*KB} {aux} lds"
            if fill is None:
                for p in pre: k(p)
                k.vm(tag, t)
            else:
                for p in pre: fill.add(1, lambda p=p: k(p))
                fill.add(1, lambda t=t: k.vm(tag, t))

    k(f"""s_cmp_ge_u32 s2, 256
    s_cbranch_scc1 Lexit
    s_load_dwordx2 s[46:47], s[0:1], 0
    s_load_dwordx2 s[44:45], s[0:1], 96
    s_load_dwordx8 s[32:39], s[0:1], 48
    s_load_dwordx4 s[40:43], s[0:1], 80
    v_lshrrev_b32 v1, 6, v0
    v_and_b32 v0, 63, v0
    v_readfirstlane_b32 {sW}, v1
    v_lshlrev_b32 v1, 4, v0
    v_add_u32 v2, 4096, v1
    v_add_u32 v3, 8192, v1
    v_and_b32 v4, 15, v0
    v_lshrrev_b32 v5, 4, v0
    v_add_u32 v6, {SLOT}, v1
    v_add_u32 v7, {2*SLOT}, v1
    v_add_u32 v8, {3*SLOT}, v1
    v_mov_b32 v9, 0
    s_and_b32 s48, s2, 7
    s_lshr_b32 s49, s2, 3
    s_lshl_b32 {sHB}, s48, 2
    s_lshr_b32 s50, s49, 3
    s_add_u32 {sHB}, {sHB}, s50
    s_and_b32 {sG}, s49, 7
    s_lshr_b32 {sRA}, {sHB}, 1
    s_and_b32 {sH}, {sHB}, 1
    s_mov_b32 {sL}, 0""")
    lr = {0: 2, 1: 1, 2: 3, 3: 4}[cfg.xmap]
    k(f"""s_and_b32 s50, s48, {(16 >> lr) - 1}
    s_lshl_b32 s50, s50, {lr}
    s_and_b32 {sR}, s49, {(1 << lr) - 1}
    s_add_u32 {sR}, {sR}, s50
    s_lshr_b32 s50, s48, {4 - lr}
    s_lshl_b32 s50, s50, {5 - lr}
    s_lshr_b32 {sFB}, s49, {lr}
    s_add_u32 {sFB}, {sFB}, s50
    s_mul_i32 s61, {sW}, {9*KB}
    s_mul_i32 s62, {sFB}, {324*KB}
    s_mov_b32 s63, 0
    s_mov_b32 s64, 0x05040100
    s_mov_b32 s65, 0x07060302
    s_waitcnt lgkmcnt(0)""")
    srd(8, 46, 47, 2359296)
    srd(4, 44, 45, 0x10000000)
    srd(20, 44, 45, 2 * LSTR, LAY0)
    srd(12, 44, 45, 2359296, X2)
    stamp(0)
    k(f"s_cmp_ge_u32 {sG}, 6\ns_cbranch_scc1 Lprep")

    def poison():
        l = k.label("po")
        k(f"""s_cmp_ge_u32 {sW}, 2
        s_cbranch_scc1 {l}
        s_mul_i32 s48, {sW}, {LSTR}
        s_lshl_b32 s49, s2, 10
        s_add_u32 s48, s48, s49
        s_add_u32 s48, s48, {ZST}
        v_mov_b32 v12, -1
        v_mov_b32 v13, -1
        v_mov_b32 v14, -1
        v_mov_b32 v15, -1
        buffer_store_dwordx4 v[12:15], v1, {WL}, s48 offen sc1
        {l}:""")

    WSPR = 68

    def wsp_load():
        srd(16, 34, 35, 8388608)
        k(f"""s_lshr_b32 s48, {sG}, 1
        s_lshl_b32 s49, {sH}, 2
        s_add_u32 s48, s48, s49
        s_lshl_b32 s48, s48, 4
        s_add_u32 s48, s48, {sRA}
        s_lshl_b32 s48, s48, 12
        s_and_b32 s49, {sG}, 1
        s_lshl_b32 s49, s49, 7
        s_add_u32 s48, s48, s49
        s_lshr_b32 s49, {sW}, 1
        s_lshl_b32 s49, s49, 6
        s_add_u32 s48, s48, s49
        s_and_b32 s49, {sW}, 1
        s_lshl_b32 s49, s49, 4
        s_add_u32 s48, s48, s49
        v_lshlrev_b32 v10, 19, v4
        v_lshl_add_u32 v10, v5, 10, v10""")
        for rr in range(4):
            for hf in range(2):
                k(f"buffer_load_dwordx4 {v(WSPR + (hf*4+rr)*4, 4)}, v10, {TMP}, s48 offen offset:{rr*256 + hf*32}")

    def wsp_store(t0):
        k(f"""s_lshr_b32 s48, {sG}, 1
        s_lshl_b32 s49, {sH}, 2
        s_add_u32 s48, s48, s49
        s_lshr_b32 s49, s48, 1
        s_lshl_b32 s50, {sRA}, 2
        s_add_u32 s49, s49, s50
        s_lshl_b32 s49, s49, 17
        s_and_b32 s48, s48, 1
        s_lshl_b32 s48, s48, 10
        s_add_u32 s49, s49, s48
        s_and_b32 s48, {sG}, 1
        s_lshl_b32 s48, s48, 1
        s_lshr_b32 s50, {sW}, 1
        s_add_u32 s48, s48, s50
        s_lshl_b32 s48, s48, 11
        s_add_u32 s49, s49, s48
        s_add_u32 s49, s49, {WSF}
        s_and_b32 s48, {sW}, 1
        s_lshl_b32 s48, s48, 3
        s_sub_u32 s48, s48, {sRA}""")
        for c in range(8):
            t = t0 + 4 * (c & 1)
            sel = "s65" if c & 1 else "s64"
            for hf in range(2):
                for p in range(2):
                    lo = WSPR + (hf*4 + 2*p)*4 + (c >> 1); hi = lo + 4
                    k(f"v_perm_b32 v{t + 2*hf + p}, v{hi}, v{lo}, {sel}")
            k(f"""s_add_u32 s50, s48, {c}
            s_and_b32 s50, s50, 15
            s_lshl_b32 s50, s50, 13
            s_add_u32 s50, s50, s49
            buffer_store_dwordx4 {v(t, 4)}, v1, {WS}, s50 offen sc1""")

    FR = 100
    k("Lhead:")
    k("s_nop 7")

    def a1_dma():
        k(f"""v_lshrrev_b32 v10, 2, v0
        v_mul_u32_u24 v10, 147456, v10
        v_and_b32 v11, 2, v5
        v_xor_b32 v11, v11, v0
        v_and_b32 v11, 3, v11
        v_lshl_add_u32 v10, v11, 4, v10
        s_lshl_b32 s48, {sH}, 2
        s_add_u32 s48, s48, {sW}
        s_lshl_b32 s48, s48, 4
        s_add_u32 s48, s48, {sRA}
        s_mul_i32 s48, s48, 1152
        s_lshl_b32 s49, {sW}, 10""")
        for ks in range(18):
            k(f"s_add_u32 m0, s49, {ks*4096 - ks*64}")
            k(f"buffer_load_dwordx4 v10, {XIN}, s48 offen offset:{ks*64} sc1 lds")

    l1 = k.label("a")
    k(f"s_cmp_lg_u32 {sL}, 0\ns_cbranch_scc1 {l1}")
    a1_dma()
    wsp_load()
    poison()
    k(f"{l1}:")

    def fcomp(kss):
        for ks in kss:
            for cp in range(4):
                c0 = 32*ks + 2*cp
                k(f"""v_fmamk_f32 v14, v12, {fl(c0)}, v13
                v_fmamk_f32 v15, v12, {fl(c0+1)}, v13
                v_cos_f32 v16, v14
                v_cos_f32 v17, v15
                v_sin_f32 v18, v14
                v_sin_f32 v19, v15
                v_cvt_pk_bf16_f32 v{FR+8*ks+cp}, v16, v17
                v_xor_b32 v{FR+8*(ks+9)+cp}, v{FR+8*ks+cp}, v20
                v_cvt_pk_bf16_f32 v{FR+8*ks+4+cp}, v18, v19
                v_xor_b32 v{FR+8*(ks+9)+4+cp}, v{FR+8*ks+4+cp}, v20""")

    l2, l3, l4, l5 = (k.label("a") for _ in range(4))
    k(f"""s_cmp_eq_u32 {sW}, 3
    s_cbranch_scc1 {l2}
    s_mul_i32 s48, {sG}, 3
    s_add_u32 s48, s48, {sW}
    s_lshl_b32 s48, s48, 4
    s_add_u32 s48, s48, 1
    v_add_u32 v12, s48, v4
    v_and_b32 v20, 1, v12
    v_mul_u32_u24 v20, 0x8000, v20
    v_lshl_or_b32 v20, v20, 16, v20
    v_cvt_f32_u32 v12, v12
    v_mul_f32 v12, {fl(1/576)}, v12
    v_lshlrev_b32 v13, 3, v5
    v_cvt_f32_u32 v13, v13
    v_mul_f32 v13, v12, v13""")
    fcomp(range(0, 4))
    k(f"""{l2}:
    s_cmp_eq_u32 {sL}, 0
    s_cbranch_scc1 {l3}
    s_waitcnt vmcnt(0)
    s_barrier
    s_cmp_lg_u32 {sW}, 3
    s_cbranch_scc1 {l3}
    s_mul_i32 s48, {sHB}, {CL}
    s_add_u32 s48, s48, {CNT + C_S6*CL}
    v_mov_b32 v10, 0""")
    signal("s48", 1, 10, 11)
    poll("s48", 1, 10, 11, 8)
    k(f"""{l3}:
    s_cmp_eq_u32 {sW}, 3
    s_cbranch_scc1 {l4}""")
    fcomp(range(4, 9))
    k(f"""v_cvt_f32_u32 v12, v4
    v_mul_f32 v12, {fl(1/16)}, v12
    v_lshlrev_b32 v13, 2, v5
    v_cvt_f32_u32 v13, v13
    v_mul_f32 v13, v12, v13""")
    for p in range(2):
        k(f"""v_fmamk_f32 v14, v12, {fl(2*p)}, v13
        v_fmamk_f32 v15, v12, {fl(2*p+1)}, v13
        v_cos_f32 v16, v14
        v_cos_f32 v17, v15
        v_sin_f32 v18, v14
        v_sin_f32 v19, v15
        v_cvt_pk_bf16_f32 v{28+p}, v16, v17
        v_cvt_pk_bf16_f32 v{34+p}, v16, v17
        v_cvt_pk_bf16_f32 v{32+p}, v18, v19
        v_cvt_pk_bf16_f32 v{30+p}, -v18, -v19""")
    k(f"""{l4}:
    s_cmp_eq_u32 {sL}, 0
    s_cbranch_scc1 {l5}
    s_barrier""")
    a1_dma()
    k(f"{l5}:")
    stamp(1)
    k(f"""v_lshrrev_b32 v10, 2, v4
    v_and_b32 v10, 2, v10
    v_xor_b32 v10, v10, v5
    v_lshl_add_u32 v10, v4, 2, v10
    v_lshlrev_b32 v10, 4, v10
    v_add_u32 v11, {SLOT}, v10""")

    def a1_wait(c):
        la, lb = k.label("w"), k.label("w")
        n = 12 - 6*c
        k(f"""s_cmp_eq_u32 {sL}, 0
        s_cbranch_scc1 {la}
        s_waitcnt vmcnt({n})
        {la}:
        s_waitcnt vmcnt({n+8})
        s_barrier""")

    def a1_read(ks, jj, dst):
        return f"ds_read_b128 {dst}, v{10 + ks//9} offset:{(ks % 9)*4096 + jj*KB}"

    lst, lj = k.label("st"), k.label("aj")
    k(f"s_cmp_eq_u32 {sW}, 3\ns_cbranch_scc1 {lst}")
    xb = lambda ks, jj: a((ks % 2)*16 + jj*4, 4)
    a1_wait(0)
    for jj in range(4): k.ds(0, a1_read(0, jj, xb(0, jj)))
    for ks in range(18):
        if ks % 6 == 5 and ks < 17: a1_wait(ks//6 + 1)
        k.wait(lg="all")
        f = Fill()
        if ks < 17:
            for jj in range(4): f.add(1, lambda jj=jj: k.ds(0, a1_read(ks+1, jj, xb(ks+1, jj))))
        mf = []
        for jj in range(4):
            for ri in range(2):
                d = v(36 + 8*jj + 4*ri, 4)
                mf.append(MF(d, xb(ks, jj), v(FR + 8*ks + 4*ri, 4), d if ks else "0"))
        weave(k, mf, [f], 1)
    k("s_barrier")
    k(f"v_lshlrev_b32 v10, 4, v5\nv_add_u32 v10, {L_RST}, v10")
    for jj in range(4): k.ds(jj, f"ds_read_b128 {v(12+4*jj, 4)}, v10 offset:{jj*64}")
    k(f"""v_mul_u32_u24 v10, {4*147456}, v5
    v_lshl_add_u32 v10, v4, 4, v10
    s_mul_i32 s48, {sG}, 3
    s_add_u32 s48, s48, {sW}
    s_lshl_b32 s48, s48, 8
    s_mul_i32 s49, {sHB}, 4608
    s_add_u32 s48, s48, s49""")
    for jj in range(4):
        k.wait(lg=jj)
        for ri in range(2):
            for p in range(2):
                d = v(36 + 8*jj + 4*ri + 2*p, 2)
                k(f"v_pk_mul_f32 {d}, {d}, {v(12+4*jj+2*p, 2)}")
    for jj in range(4):
        for q in range(4):
            k(f"v_cvt_pk_bf16_f32 v{100+4*jj+q}, v{36+8*jj+2*q}, v{37+8*jj+2*q}")
    for jj in range(4):
        k(MF(v(36+8*jj, 4), v(28, 4), v(100+4*jj, 4), "0"))
        k(MF(v(40+8*jj, 4), v(32, 4), v(100+4*jj, 4), "0"))
    for rr in range(4):
        for jj in range(4):
            k(f"v_cvt_pk_bf16_f32 v{116+4*rr+jj}, v{36+8*jj+rr}, v{40+8*jj+rr}")
        k(f"buffer_store_dwordx4 {v(116+4*rr, 4)}, v10, {WL}, s48 offen sc1")
        if rr < 3: k("s_add_u32 s48, s48, 147456")
    k(f"""v_mul_u32_u24 v10, 147456, v4
    v_lshl_add_u32 v10, v5, 4, v10
    s_lshl_b32 s48, {sH}, 6
    s_add_u32 s48, s48, {sRA}
    s_mul_i32 s48, s48, 1152
    s_mul_i32 s49, {sG}, 3
    s_add_u32 s49, s49, {sW}
    s_lshl_b32 s49, s49, 6
    s_add_u32 s48, s48, s49""")
    for jo in range(4):
        k(f"buffer_load_dwordx4 {v(132+4*jo, 4)}, v10, {XIN}, s48 offen sc1")
        if jo < 3: k(f"s_add_u32 s48, s48, {16*1152}")
    k(f"s_branch {lj}")
    k(f"{lst}:")
    k.lq.clear()
    k("s_mov_b32 s48, 0x3f803f80")
    for q in range(8): k(f"v_mov_b32 v{12+q}, 0")
    xs = lambda ks, jj: 100 + (ks % 2)*16 + jj*4
    a1_wait(0)
    for jj in range(4): k(a1_read(0, jj, v(xs(0, jj), 4)))
    for ks in range(18):
        if ks % 6 == 5 and ks < 17: a1_wait(ks//6 + 1)
        k("s_waitcnt lgkmcnt(0)")
        if ks < 17:
            for jj in range(4): k(a1_read(ks+1, jj, v(xs(ks+1, jj), 4)))
        for q in range(4):
            for jj in range(4):
                k(f"v_dot2c_f32_bf16 v{12+jj}, s48, v{xs(ks, jj)+q}")
                k(f"v_dot2c_f32_bf16 v{16+jj}, v{xs(ks, jj)+q}, v{xs(ks, jj)+q}")
    red4([12, 13, 14, 15]); red4([16, 17, 18, 19])
    k(f"""v_mul_f32 v12, {fl(1/576)}, v12
    v_mul_f32 v16, {fl(1/576)}, v16
    v_fma_f32 v16, -v12, v12, v16
    v_add_f32 v16, {fl(EPS)}, v16
    v_rsq_f32 v16, v16
    v_lshlrev_b32 v10, 2, v0
    v_add_u32 v10, {L_RST}, v10
    ds_write_b32 v10, v16
    s_waitcnt lgkmcnt(0)
    s_barrier
    s_cmp_lg_u32 {sL}, 0
    s_cbranch_scc1 {lj}""")
    gate(10, 11)
    wsp_store(12)
    k(f"{lj}:")
    stamp(2)
    k(f"""s_lshl_b32 s48, {sH}, 2
    s_add_u32 s48, s48, {sW}
    s_lshl_b32 s48, s48, 4
    s_add_u32 s48, s48, {sRA}
    v_lshl_add_u32 v12, v4, 7, s48
    v_cvt_f32_u32 v12, v12
    s_mov_b32 s49, {fl(-1/2048)}
    s_cmp_ge_u32 {sG}, 3
    s_cselect_b32 s49, {fl(1/2048)}, s49
    v_mul_f32 v12, s49, v12
    v_and_b32 v13, 1, v5
    v_lshlrev_b32 v13, 6, v13
    v_lshrrev_b32 v14, 1, v5
    v_add_u32 v13, v13, v14
    v_cvt_f32_u32 v13, v13
    v_mul_f32 v13, v12, v13
    s_lshl_b32 s48, {sW}, 13
    v_add_u32 v10, s48, v1""")
    for kp in range(8):
        t = 20 + 4*(kp & 1)
        for jp in range(2):
            k(f"""v_fmamk_f32 v14, v12, {fl(2*kp + 32*jp)}, v13
            v_fmamk_f32 v15, v12, {fl(2*kp + 32*jp + 16)}, v13
            v_cos_f32 v16, v14
            v_sin_f32 v17, v14
            v_cos_f32 v18, v15
            v_sin_f32 v19, v15
            v_cvt_pk_bf16_f32 v{t+2*jp}, v16, v17
            v_cvt_pk_bf16_f32 v{t+2*jp+1}, v18, v19""")
        k(f"ds_write_b128 v10, {v(t, 4)} offset:{kp*KB}")
    lc, ld_, le = k.label("c"), k.label("c"), k.label("c")
    k(f"""s_cmp_eq_u32 {sW}, 3
    s_cbranch_scc1 {lc}
    s_waitcnt vmcnt(4) lgkmcnt(0)
    s_barrier""")
    stamp(3)
    for n in range(32): k(f"ds_read_b128 {a(4*n, 4)}, v1 offset:{n*KB}")
    k("s_waitcnt vmcnt(0)")
    for jo in range(4):
        for q in range(4):
            k(f"v_lshlrev_b32 v{36+8*jo+2*q}, 16, v{132+4*jo+q}")
            k(f"v_and_b32 v{37+8*jo+2*q}, 0xffff0000, v{132+4*jo+q}")
    k(f"s_cmp_lg_u32 {sL}, 0\ns_cbranch_scc1 {ld_}")
    wsp_store(12)
    k(f"{ld_}:")
    k(f"""s_mul_i32 s50, {sG}, 3
    s_add_u32 s50, s50, {sW}
    s_lshl_b32 s48, s50, 5
    v_lshrrev_b32 v10, 2, v4
    v_lshlrev_b32 v10, 3, v10
    v_and_b32 v11, 3, v4
    v_add3_u32 v10, v10, v11, s48
    v_cmp_eq_u32 vcc, 0, v10
    s_sub_u32 s51, 16, {sRA}
    s_and_b32 s51, s51, 15
    s_cmp_ge_u32 {sG}, 3
    s_cselect_b32 s48, -16, 16
    s_cselect_b32 s49, {575*16}, -16
    s_cselect_b32 s51, s51, {sRA}
    v_mul_lo_u32 v10, v10, s48
    v_add_u32 v10, s49, v10
    v_mul_u32_u24 v11, 4608, v5
    v_add_u32 v10, v10, v11
    s_lshl_b32 s48, s48, 2
    v_add_u32 v11, s48, v10
    v_mov_b32 v12, 0x7ff00000
    v_cndmask_b32 v10, v10, v12, vcc
    s_mul_i32 s51, s51, 147456
    s_waitcnt lgkmcnt(0)
    s_barrier""")
    stamp(4)
    k.vq.clear()
    for kp in range(8):
        for hf in range(2):
            k.vm(kp, f"buffer_load_dwordx4 {a(128 + (2*kp+hf)*4, 4)}, v{10+hf}, {WL}, s51 offen sc1")
        if kp < 7: k("s_add_u32 s51, s51, 18432")
    k("s_barrier")
    k(f"""s_lshl_b32 s48, {sHB}, 2
    s_mul_i32 s48, s48, 18
    s_add_u32 s48, s48, s50
    s_lshl_b32 s49, s48, 7
    s_add_u32 s49, s49, {XST}
    s_lshl_b32 s48, s48, 10
    s_add_u32 s48, s48, {XF}
    v_mul_u32_u24 v10, 2304, v5
    v_lshl_add_u32 v10, v4, 3, v10""")
    for kp in range(8):
        k.wait(vm=kp)
        for jo in range(4):
            for hf in range(2):
                d = v(36 + 8*jo + 4*hf, 4)
                k(MF(d, a(128 + (2*kp+hf)*4, 4), a((jo*8+kp)*4, 4), d))
    for jo in range(4):
        for q in range(4):
            k(f"v_cvt_pk_bf16_f32 v{100+4*jo+q}, v{36+8*jo+2*q}, v{37+8*jo+2*q}")
        k(f"buffer_store_dwordx4 {v(100+4*jo, 4)}, v1, {WL}, s48 offen sc1")
        if jo < 3: k(f"s_add_u32 s48, s48, {18*KB}")
    for jo in range(4):
        b0 = 36 + 8*jo
        k(f"""v_pk_add_f32 v[20:21], {v(b0, 2)}, {v(b0+2, 2)}
        v_pk_mul_f32 v[22:23], {v(b0, 2)}, {v(b0, 2)}
        v_pk_add_f32 v[20:21], v[20:21], {v(b0+4, 2)}
        v_pk_fma_f32 v[22:23], {v(b0+2, 2)}, {v(b0+2, 2)}, v[22:23]
        v_pk_add_f32 v[20:21], v[20:21], {v(b0+6, 2)}
        v_pk_fma_f32 v[22:23], {v(b0+4, 2)}, {v(b0+4, 2)}, v[22:23]
        v_add_f32 v{12+2*jo}, v20, v21
        v_pk_fma_f32 v[22:23], {v(b0+6, 2)}, {v(b0+6, 2)}, v[22:23]
        v_add_f32 v{13+2*jo}, v22, v23""")
    red4([12, 14, 16, 18]); red4([13, 15, 17, 19])
    k(f"""buffer_store_dwordx2 v[12:13], v10, {WL}, s49 offen sc1
    s_waitcnt vmcnt(0)
    s_branch Ljoin""")

    def sp_wait_and_cs():
        k(f"""s_and_b32 s48, s2, 15
        s_mul_i32 s48, s48, {4*CL}
        s_add_u32 s48, s48, {CNT + C_SP*CL}
        v_mul_u32_u24 v10, {CL}, v0""")
        poll("s48", 15, 10, 11, 16)

    def cs_load():
        k(f"""s_mul_i32 s48, {sFB}, 576
        s_add_u32 s48, s48, {CSP}
        s_bfm_b64 exec, 36, 0""")
        for kc in range(6):
            k(f"s_add_u32 s49, s48, {kc*18432 + 9216}")
            k(f"buffer_load_dwordx4 {v(100+8*kc, 4)}, v1, {WS}, s49 offen sc1")
            k(f"s_add_u32 s49, s48, {kc*18432}")
            k(f"buffer_load_dwordx4 {v(104+8*kc, 4)}, v1, {WS}, s49 offen sc1")
        k("s_mov_b64 exec, -1")

    def cs_sum():
        for kc in range(1, 6):
            for q in range(4):
                k(f"v_pk_add_f32 {v(100+2*q, 2)}, {v(100+2*q, 2)}, {v(100+8*kc+2*q, 2)}")
        k(f"""v_add_u32 v10, {L_CS}, v1
        s_bfm_b64 exec, 36, 0
        ds_write_b128 v10, v[100:103]
        ds_write_b128 v10, v[104:107] offset:576
        s_mov_b64 exec, -1""")

    k(f"""{lc}:
    s_waitcnt lgkmcnt(0)
    s_barrier
    s_lshl_b32 s48, {sG}, 1
    s_lshr_b32 s49, {sHB}, 4
    s_add_u32 s48, s48, s49
    s_mul_i32 s48, s48, {CL}
    s_add_u32 s48, s48, {CNT + C_S1*CL}
    v_mul_u32_u24 v10, {12*CL}, v0""")
    signal("s48", 0xff, 10, 11)
    k(f"""s_lshl_b32 s48, {sG}, 2
    s_lshr_b32 s49, 0x024310, s48
    s_and_b32 s49, s49, 15
    s_lshr_b32 s50, 0x444664, s48
    s_and_b32 s50, s50, 15
    s_bfm_b64 s[52:53], s50, 0
    s_lshl_b32 s49, s49, 1
    s_lshr_b32 s50, {sHB}, 2
    s_mul_i32 s50, s50, 12
    s_add_u32 s49, s49, s50
    s_mul_i32 s49, s49, {CL}
    s_add_u32 s49, s49, {CNT + C_S1*CL}
    v_mul_u32_u24 v10, {CL}, v0""")
    poll("s49", "s[52:53]", 10, 11, 16)
    k(f"""s_barrier
    s_barrier
    s_cmp_lg_u32 {sL}, 0
    s_cbranch_scc1 {le}""")
    sp_wait_and_cs()
    cs_load()
    k("s_waitcnt vmcnt(0)")
    cs_sum()
    k(f"{le}:")
    dma_run("w", WS, "s62", 0, "s63", 0, 72)
    k("s_branch Ljoin")

    k("Lprep:")
    lp1, lp2, lp3, lp4, lp5 = (k.label("q") for _ in range(5))
    k(f"""s_cmp_lg_u32 s2, 255
    s_cbranch_scc1 {lp1}
    s_cmp_lg_u32 {sW}, 3
    s_cbranch_scc1 {lp1}
    v_mul_u32_u24 v10, {CL}, v0
    v_mov_b32 v11, 0""")
    for L in range(2):
        for q in range(4):
            k(f"s_mov_b32 s48, {L*LSTR + CNT + q*64*CL}\nbuffer_store_dword v11, v10, {WL}, s48 offen sc1")
    srd(16, 42, 43, 256)
    k(f"""v_mov_b32 v12, 1
    s_waitcnt vmcnt(0)
    s_mov_b64 exec, 1
    buffer_store_dword v12, v11, {TMP}, 0 offen sc1
    s_mov_b64 exec, -1
    {lp1}:""")
    poison()
    k(f"""s_lshl_b32 s66, {sHB}, 1
    s_add_u32 s66, s66, {sG}
    s_sub_u32 s66, s66, 6
    s_lshl_b32 s67, {sW}, 6
    s_add_u32 s67, s67, s66
    s_cmp_ge_u32 s67, 216
    s_cbranch_scc1 {lp2}""")
    srd(16, 32, 33, 5308416)
    k(f"""s_mul_i32 s68, s67, 1821
    s_lshr_b32 s68, s68, 16
    s_mul_i32 s48, s68, 36
    s_sub_u32 s69, s67, s48
    s_mul_i32 s48, s68, {96*9216}
    s_lshl_b32 s49, s69, 8
    s_add_u32 s48, s48, s49
    v_mul_u32_u24 v10, {8*9216}, v5
    v_lshl_add_u32 v10, v4, 4, v10""")
    k.vq.clear()
    for q in range(3):
        for rr in range(8):
            k(f"s_add_u32 s49, s48, {(32*q + rr)*9216}")
            k.vm(q, f"buffer_load_dwordx4 {v(100 + (q*8+rr)*4, 4)}, v10, {TMP}, s49 offen")
    k(f"""s_mov_b32 s50, {4*KB}
    s_mov_b32 s52, {230*KB}
    s_cmp_ge_u32 s69, 18
    s_cselect_b32 s50, {5*KB}, s50
    s_cselect_b32 s51, 0, {162*KB}
    s_cselect_b32 s52, {85*KB}, s52
    s_cselect_b32 s53, 18, 0
    s_sub_u32 s53, s69, s53
    s_lshl_b32 s53, s53, 3
    s_sub_u32 s54, {9*KB}, s50
    s_mul_i32 s55, s68, 3""")
    for c in range(8):
        k(f"""s_add_u32 s48, s53, {c}
        s_mul_i32 s49, s48, 57
        s_lshr_b32 s49, s49, 9
        s_mul_i32 s56, s49, 9
        s_sub_u32 s48, s48, s56
        s_lshl_b32 s48, s48, 10
        s_mul_i32 s49, s49, {324*KB}
        s_add_u32 s49, s49, s48
        s_cmp_lt_u32 s48, s50
        s_cselect_b32 s{80+c}, s50, s54
        s_cselect_b32 s48, s51, s52
        s_add_u32 s49, s49, s48
        s_mul_i32 s48, s55, s{80+c}
        s_add_u32 s{70+c}, s49, s48""")
    k("s_mov_b32 s48, 0x3f803f80")
    for c in range(8): k(f"v_mov_b32 v{20+c}, 0")
    for q in range(3):
        k.wait(vm=q)
        for c in range(8):
            t = 12 + 4*(c & 1)
            sel = "s65" if c & 1 else "s64"
            for m in range(4):
                lo = 100 + (q*8 + 2*m)*4 + (c >> 1)
                k(f"v_perm_b32 v{t+m}, v{lo+4}, v{lo}, {sel}")
            k.vm("st", f"buffer_store_dwordx4 {v(t, 4)}, v1, {WS}, s{70+c} offen sc1")
            for m in range(4): k(f"v_dot2c_f32_bf16 v{20+c}, s48, v{t+m}")
            if q < 2: k(f"s_add_u32 s{70+c}, s{70+c}, s{80+c}")
    red4([20, 21, 22, 23]); red4([24, 25, 26, 27])
    k(f"""s_mul_i32 s48, s68, 18432
    s_lshl_b32 s49, s69, 9
    s_add_u32 s48, s48, s49
    s_add_u32 s48, s48, {CSP}
    v_lshlrev_b32 v10, 2, v0
    buffer_store_dword v20, v10, {WS}, s48 offen sc1
    buffer_store_dword v24, v10, {WS}, s48 offen offset:256 sc1""")
    srd(16, 38, 39, 2654208)
    k(f"""s_mul_i32 s68, s67, 21846
    s_lshr_b32 s68, s68, 16
    s_mul_i32 s48, s68, 3
    s_sub_u32 s69, s67, s48
    s_mul_i32 s48, s68, 3641
    s_lshr_b32 s48, s48, 16
    s_mul_i32 s49, s48, 18
    s_sub_u32 s49, s68, s49
    s_lshl_b32 s48, s48, 2
    s_lshr_b32 s50, s49, 2
    s_add_u32 s50, s50, s48
    s_mul_i32 s50, s50, 9
    s_and_b32 s51, s49, 3
    s_lshl_b32 s51, s51, 1
    s_add_u32 s50, s50, s51
    s_add_u32 s51, s51, s48
    s_mul_i32 s51, s51, 9
    s_add_u32 s51, s51, 8
    s_cmp_ge_u32 s49, 16
    s_cselect_b32 s50, s51, s50
    s_cselect_b32 s51, 9, 1
    s_add_u32 s51, s51, s50
    s_mul_i32 s54, s69, 384""")
    for hf in range(2):
        k(f"""s_lshr_b32 s48, s{50+hf}, 3
        s_lshl_b32 s48, s48, 7
        s_and_b32 s49, s{50+hf}, 7
        s_add_u32 s48, s48, s49
        s_mul_i32 s48, s48, 1152
        s_add_u32 s{52+hf}, s48, s54""")
    k(f"""v_bfe_u32 v28, v4, 1, 1
    v_lshlrev_b32 v28, 3, v28
    v_lshrrev_b32 v11, 2, v4
    v_lshl_add_u32 v28, v11, 1, v28
    v_and_b32 v11, 1, v4
    v_add_u32 v28, v28, v11
    v_mul_u32_u24 v10, {32*1152}, v5
    v_lshl_add_u32 v10, v28, 3, v10""")
    WOR = 196
    for hf in range(2):
        for rr in range(4):
            k(f"s_add_u32 s48, s{52+hf}, {rr*8*1152}")
            for m in range(3):
                k(f"buffer_load_dwordx2 {v(WOR + ((m*2+hf)*4+rr)*2, 2)}, v10, {TMP}, s48 offen offset:{m*128}")
    wsp_load()
    k(f"""s_waitcnt vmcnt(32)
    s_branch {lp3}
    {lp2}:
    s_waitcnt vmcnt(0)""")
    wsp_load()
    k(f"""{lp3}:
    s_barrier
    s_cmp_lg_u32 {sW}, 3
    s_cbranch_scc1 {lp4}""")
    gate(10, 11)
    k(f"""s_and_b32 s48, s66, 3
    s_mul_i32 s48, s48, {CL}
    s_add_u32 s48, s48, {CNT + C_SP*CL}
    v_mul_u32_u24 v10, {4*CL}, v0""")
    signal("s48", 0xffff, 10, 11)
    k(f"""{lp4}:
    s_waitcnt vmcnt(0)
    s_cmp_ge_u32 s67, 216
    s_cbranch_scc1 {lp5}""")
    k(f"""s_mul_i32 s48, s69, {3*4*18*4*KB}
    s_lshl_b32 s49, s68, 12
    s_add_u32 s48, s48, s49
    s_add_u32 s48, s48, {WOF}
    s_lshl_b32 s49, s68, 10
    s_add_u32 s49, s49, {WOX}
    s_add_u32 s50, s48, {2*4*18*4*KB}
    s_cmp_eq_u32 s69, 2
    s_cselect_b32 s50, s49, s50
    s_cselect_b32 s51, 16, {KB}
    s_cselect_b64 vcc, -1, 0
    v_lshrrev_b32 v10, 2, v28
    v_mul_u32_u24 v10, {72*KB}, v10
    v_and_b32 v11, 3, v28
    v_lshl_add_u32 v10, v11, 6, v10
    v_lshl_add_u32 v10, v5, 8, v10
    v_cndmask_b32 v10, v1, v10, vcc""")
    for m in range(3):
        for c in range(4):
            t = 12 + 4*(c & 1)
            sel = "s65" if c & 1 else "s64"
            for hf in range(2):
                for p in range(2):
                    lo = WOR + ((m*2+hf)*4 + 2*p)*2 + (c >> 1)
                    k(f"v_perm_b32 v{t+2*hf+p}, v{lo+2}, v{lo}, {sel}")
            if m < 2:
                k(f"buffer_store_dwordx4 {v(t, 4)}, v1, {WS}, s48 offen offset:{c*KB} sc1")
            else:
                k(f"buffer_store_dwordx4 {v(t, 4)}, v10, {WS}, s50 offen sc1\ns_add_u32 s50, s50, s51")
        if m == 0: k(f"s_add_u32 s48, s48, {4*18*4*KB}")
    k(f"{lp5}:")
    wsp_store(12)
    lp6 = k.label("q")
    k(f"s_cmp_lg_u32 {sW}, 3\ns_cbranch_scc1 {lp6}")
    sp_wait_and_cs()
    cs_load()
    k("s_waitcnt vmcnt(0)")
    cs_sum()
    k(f"""{lp6}:
    s_waitcnt vmcnt(0)
    s_barrier
    Lprep1:
    s_lshl_b32 s48, s61, 1
    s_add_u32 s49, s62, s48""")
    dma_run("w", WS, "s49", 0, "s48", 0, 18)

    k("Ljoin:")
    k("s_barrier")
    stamp(5)
    lq = k.label("j")
    k(f"""s_cmp_lg_u32 {sW}, 0
    s_cbranch_scc1 {lq}
    s_mul_i32 s48, {sRA}, {CL}
    s_add_u32 s48, s48, {CNT + C_S2*CL}
    v_mov_b32 v10, 0""")
    signal("s48", 1, 10, 11)
    k(f"{lq}:")
    stop(2)
    k.vq.clear(); k.lq.clear()
    k("s_add_u32 s66, s62, s61")
    srd(16, 36, 37, 4096)
    k(f"""s_lshl_b32 s48, {sW}, 5
    s_add_u32 s48, s48, {sR}
    s_lshl_b32 s48, s48, 1
    v_lshlrev_b32 v10, 8, v4""")
    k.vm("old", f"buffer_load_ushort v18, v10, {TMP}, s48 offen")
    k.vm("old", f"buffer_load_ushort v19, v10, {TMP}, s48 offen offset:32")
    dma_run(("W", 2), WS, "s66", 2*SLOT, "s61", 2*SLOT, 9)
    lq = k.label("j")
    k(f"""s_lshl_b32 s48, {sR}, 3
    s_lshl_b32 s49, {sW}, 1
    s_add_u32 s48, s48, s49
    s_mul_i32 s67, s48, {18*KB}
    s_add_u32 s67, s67, {XF}
    s_add_u32 s68, s67, {18*KB}
    s_mul_i32 s69, s48, 2304
    s_add_u32 s69, s69, {XST}
    v_mul_u32_u24 v20, 1152, v5
    v_lshl_add_u32 v20, v4, 3, v20
    s_cmp_lg_u32 {sW}, 0
    s_cbranch_scc1 {lq}
    s_mul_i32 s48, {sR}, {CL}
    s_add_u32 s48, s48, {CNT + C_S2*CL}
    v_mov_b32 v10, 0""")
    poll("s48", 1, 10, 11, 16)
    k(f"{lq}:")
    k.wait(vm="old")
    k("s_waitcnt lgkmcnt(0)\ns_barrier")
    stamp(6)

    AC2, AC1, WB = 36, 108, 180
    X = lambda ks, jt: a((2*ks + jt)*4, 4)
    acc2 = lambda ft, jt: AC2 + (2*ft + jt)*4
    acc1 = lambda ft, jt: AC1 + (2*ft + jt)*4
    NMU, K0, K1, SS, QQ, CS2, GT = 108, 116, 124, 132, 140, 148, 160
    XSR = 220

    def xload(ks, jt):
        if ks == 12 and jt == 0: k(f"s_add_u32 s67, s67, {12*KB}\ns_add_u32 s68, s68, {12*KB}")
        k.vm(("x", ks), f"buffer_load_dwordx4 {X(ks, jt)}, {VOFF[(ks % 12)//4]}, {WL}, s{67+jt} offen offset:{(ks % 4)*KB} sc1")

    chunks = [("z2", list(range(0, 5))), ("z2", list(range(5, 9))), ("z1", list(range(0, 4))), ("z1", list(range(4, 9)))]
    steps = []
    pos = 0
    for ci, (_, tl) in enumerate(chunks):
        for ks in range(18):
            steps.append((ci, ks, pos)); pos += len(tl)
    fdma = Fill()
    state = {"slot": 0}

    def wbuf(si, q): return v(WB + (si % 2)*20 + q*4, 4)

    def wread(si, q):
        n = steps[si][2] + q
        m = n // 36
        if m > state["slot"]:
            state["slot"] = m
            assert m < 2 or k.issued.get(("W", m), 0) == 9, (m, k.issued.get(("W", m)))
            k.wait(vm=("W", m))
            k("s_barrier")
            if 3 <= m + 2 <= 8:
                dma_run(("W", m+2), WS, "s66", (m+2)*SLOT, "s61", ((m+2) % 4)*SLOT, 9, fill=fdma)
        k.ds(("r", si), f"ds_read_b128 {wbuf(si, q)}, {LB[m % 4]} offset:{(n % 36)*KB}")

    pool = [a(144 + 4*i, 4) for i in range(28)]
    wreg = {}
    wst = {"n": 0}
    k(f"""s_lshl_b32 s70, {sR}, 2
    s_add_u32 s70, s70, {sW}
    s_lshl_b32 s70, s70, 17
    s_add_u32 s70, s70, {WSF}""")

    def wsp_next(fill):
        n = wst["n"]; wst["n"] += 1
        if n % 12 == 0: fill.add(1, lambda: k(f"s_add_u32 s71, s70, {n*KB}"))
        def go():
            wreg[n] = pool.pop(0)
            k.vm(("s", n), f"buffer_load_dwordx4 {wreg[n]}, {VOFF[(n % 12)//4]}, {WS}, s71 offen offset:{(n % 4)*KB}")
        fill.add(1, go)

    def gelu_scalar(f, regs, nmu, cs, k0, k1, stats=None, T=GT):
        n = len(regs)
        t = [T + i for i in range(n)]
        for i in range(n): f.txt(k, f"v_fmac_f32 v{regs[i]}, v{nmu[i]}, v{cs[i]}")
        for i in range(n): f.txt(k, f"v_mul_f32 v{t[i]}, v{regs[i]}, v{regs[i]}")
        for i in range(n): f.txt(k, f"v_fma_f32 v{t[i]}, v{t[i]}, v{k1[i]}, v{k0[i]}")
        for i in range(n): f.txt(k, f"v_mul_f32 v{t[i]}, v{regs[i]}, v{t[i]}")
        for i in range(n): f.txt(k, f"v_exp_f32 v{t[i]}, v{t[i]}")
        for i in range(n): f.txt(k, f"v_add_f32 v{t[i]}, 1.0, v{t[i]}")
        for i in range(n): f.txt(k, f"v_rcp_f32 v{t[i]}, v{t[i]}")
        for i in range(n): f.txt(k, f"v_mul_f32 v{regs[i]}, v{regs[i]}, v{t[i]}")
        if stats:
            for i in range(n):
                f.txt(k, f"v_add_f32 v{stats[0]+i}, v{stats[0]+i}, v{regs[i]}")
                f.txt(k, f"v_fmac_f32 v{stats[1]+i}, v{regs[i]}, v{regs[i]}")

    def bc(r):
        return v(r & ~1, 2), r & 1

    def pk(op, d, *src):
        ops, lo, hi = [], [], []
        for x in src:
            if isinstance(x, tuple): p, sl = bc(x[1]); ops.append(p); lo.append(sl); hi.append(sl)
            elif isinstance(x, str): ops.append(x); lo.append(0); hi.append(0)
            else: ops.append(v(x, 2)); lo.append(0); hi.append(1)
        m = ""
        if any(lo): m += " op_sel:[" + ",".join(map(str, lo)) + "]"
        if not all(hi): m += " op_sel_hi:[" + ",".join(map(str, hi)) + "]"
        return f"v_pk_{op}_f32 {v(d, 2)}, " + ", ".join(ops) + m

    def gelu_pk(R, nmu, cs, k0, k1, stats=None, T=GT):
        for p in range(2): k(pk("fma", R+2*p, nmu(p), cs(p), R+2*p))
        for p in range(2): k(pk("mul", T+2*p, R+2*p, R+2*p))
        for p in range(2): k(pk("fma", T+2*p, T+2*p, k1(p), k0(p)))
        for p in range(2): k(pk("mul", T+2*p, R+2*p, T+2*p))
        for i in range(4): k(f"v_exp_f32 v{T+i}, v{T+i}")
        for p in range(2): k(pk("add", T+2*p, T+2*p, "1.0"))
        for i in range(4): k(f"v_rcp_f32 v{T+i}, v{T+i}")
        for p in range(2): k(pk("mul", R+2*p, R+2*p, T+2*p))
        if stats:
            for p in range(2):
                k(pk("add", stats[0]+2*p, stats[0]+2*p, R+2*p))
                k(pk("fma", stats[1]+2*p, R+2*p, R+2*p, stats[1]+2*p))

    C0 = -2 * math.log2(math.e) * math.sqrt(2 / math.pi)
    C1 = C0 * 0.044715
    for ks in range(2):
        for jt in range(2): xload(ks, jt)
    for n in range(9): k.vm("xs", f"buffer_load_dwordx2 {v(XSR+2*n, 2)}, v20, {WL}, s69 offen offset:{n*128} sc1")
    for ks in range(2, 4):
        for jt in range(2): xload(ks, jt)
    for q in range(5): wread(0, q)
    k(f"v_lshlrev_b32 v21, 2, v4\nv_add_u32 v21, {L_CS}, v21")
    for ft in range(9): k.ds("cs", f"ds_read_b32 v{CS2+ft}, v21 offset:{ft*64}")
    for q in range(16): k(f"v_mov_b32 v{SS+q}, 0")
    k(f"""s_lshl_b32 s48, {sW}, 8
    s_add_u32 s48, s48, {L_SCR}
    v_lshrrev_b32 v21, 1, v5
    v_lshlrev_b32 v21, 6, v21
    v_lshl_add_u32 v21, v4, 2, v21
    v_add_u32 v21, s48, v21
    v_lshl_add_u32 v22, v5, 4, s48
    v_lshlrev_b32 v18, 16, v18
    v_lshlrev_b32 v19, 16, v19""")
    fval = Fill()

    def x1_stats():
        f = fval
        f.add(1, lambda: k.wait(vm="xs"))
        for n in range(1, 9):
            f.txt(k, f"v_add_f32 v{XSR}, v{XSR}, v{XSR+2*n}\nv_add_f32 v{XSR+1}, v{XSR+1}, v{XSR+2*n+1}")
        f.txt(k, f"""v_mov_b32 v{XSR+2}, v{XSR}
        v_mov_b32 v{XSR+3}, v{XSR+1}
        s_nop 0
        v_permlane16_swap_b32 v{XSR}, v{XSR+2}
        v_permlane16_swap_b32 v{XSR+1}, v{XSR+3}
        v_add_f32 v{XSR}, v{XSR}, v{XSR+2}
        v_add_f32 v{XSR+1}, v{XSR+1}, v{XSR+3}
        v_mul_f32 v10, {fl(-1/576)}, v{XSR}
        v_mul_f32 v16, {fl(1/576)}, v{XSR+1}
        v_fma_f32 v16, -v10, v10, v16
        v_add_f32 v16, {fl(EPS)}, v16
        v_rsq_f32 v16, v16
        v_mov_b32 v11, v10""")
        f.add(1, lambda: k.ds("sc", "ds_write_b32 v21, v10"))
        f.add(1, lambda: k.ds("sc", "ds_write_b32 v21, v16 offset:128"))
        f.txt(k, "v_mov_b32 v17, v16")
        for jt in range(2):
            f.add(1, lambda jt=jt: k.ds("sc", f"ds_read_b128 {v(NMU+4*jt, 4)}, v22 offset:{jt*64}"))
            f.add(1, lambda jt=jt: k.ds("sc", f"ds_read_b128 {v(K0+4*jt, 4)}, v22 offset:{128+jt*64}"))
        f.txt(k, """v_permlane32_swap_b32 v10, v11
        v_permlane32_swap_b32 v16, v17""")
        for jt in range(2):
            f.txt(k, f"""v_mul_f32 v{12+jt}, {fl(C0)}, v{16+jt}
            v_mul_f32 v{14+jt}, v{16+jt}, v{16+jt}
            v_mul_f32 v{18+jt}, v{18+jt}, v{16+jt}
            v_mul_f32 v{14+jt}, v{14+jt}, v{12+jt}
            v_mul_f32 v{14+jt}, {fl(0.044715)}, v{14+jt}""")
        f.add(1, lambda: k.wait(lg="sc"))
        for q in range(8):
            f.txt(k, f"""v_mul_f32 v{K1+q}, v{K0+q}, v{K0+q}
            v_mul_f32 v{K0+q}, {fl(C0)}, v{K0+q}
            v_mul_f32 v{K1+q}, {fl(0.044715)}, v{K1+q}
            v_mul_f32 v{K1+q}, v{K1+q}, v{K0+q}""")

    quads2 = [(ft, jt) for ft in range(9) for jt in range(2)]
    done2 = []

    def g2_scalar(ft, jt):
        R = acc2(ft, jt)
        gelu_scalar(fval, [R+i for i in range(4)], [NMU+4*jt+i for i in range(4)], [CS2+ft]*4,
                    [K0+4*jt+i for i in range(4)], [K1+4*jt+i for i in range(4)], (SS+4*jt, QQ+4*jt))

    def g2_pk(ft, jt):
        gelu_pk(acc2(ft, jt), lambda p: NMU+4*jt+2*p, lambda p: ("b", CS2+ft), lambda p: K0+4*jt+2*p,
                lambda p: K1+4*jt+2*p, (SS+4*jt, QQ+4*jt))

    ZL, RHO, NMR = 236, 220, 228

    def zst_load():
        for n in range(4):
            k.vm("zl", f"buffer_load_dwordx4 {v(ZL+4*n, 4)}, v23, {WL}, s72 offen offset:{n*KB} sc1")

    for si, (ci, ks, p0) in enumerate(steps):
        part, tl = chunks[ci]
        if ci == 0:
            k.wait(vm=("x", ks))
            if ks == 3: x1_stats()
        if ci == 1 and ks == 0:
            fval.flush()
            for ft, jt in quads2[:cfg.G1]:
                g2_scalar(ft, jt); done2.append((ft, jt))
        if ci == 2 and ks == 0:
            stamp(7)
            fval.flush()
            for q in quads2:
                if q not in done2:
                    g2_pk(*q)
                    if fdma.q:
                        for _ in range(min(2, len(fdma.q))): fdma.q.pop(0)[1]()
            T = GT
            for sq, B in enumerate((SS, QQ)):
                for rr in range(4):
                    k(f"v_add_f32_dpp v{T+2*rr+sq}, v{B+rr}, v{B+rr} row_ror:8 row_mask:0xf bank_mask:0x3")
                for rr in range(4):
                    k(f"v_add_f32_dpp v{T+2*rr+sq}, v{B+4+rr}, v{B+4+rr} row_ror:8 row_mask:0xf bank_mask:0xc")
            for q in range(4):
                k(f"v_add_f32_dpp v{T+8+q}, v{T+q}, v{T+q} row_shl:4 row_mask:0xf bank_mask:0x5")
            for q in range(4):
                k(f"v_add_f32_dpp v{T+8+q}, v{T+4+q}, v{T+4+q} row_shr:4 row_mask:0xf bank_mask:0xa")
            for qp in ("[1,0,3,2]", "[2,3,0,1]"):
                for q in range(4):
                    k(f"v_add_f32_dpp v{T+8+q}, v{T+8+q}, v{T+8+q} quad_perm:{qp} row_mask:0xf bank_mask:0xf")
            k(f"""s_lshl_b32 s72, {sR}, 2
            s_add_u32 s72, s72, {sW}
            s_lshl_b32 s72, s72, 12
            s_add_u32 s72, s72, {ZST}
            s_lshl_b32 s48, {sFB}, 8
            s_add_u32 s48, s48, s72
            v_lshlrev_b32 v23, 2, v0
            s_mov_b32 exec_lo, 0x11111111
            s_mov_b32 exec_hi, 0x11111111""")
            k.vm("zs", f"buffer_store_dwordx4 {v(T+8, 4)}, v23, {WL}, s48 offen sc1")
            k(f"""s_mov_b64 exec, -1
            v_lshrrev_b32 v23, 2, v4
            v_lshlrev_b32 v23, 8, v23
            v_lshl_add_u32 v23, v5, 6, v23
            v_and_b32 v24, 3, v4
            v_lshl_add_u32 v23, v24, 4, v23
            v_and_b32 v24, 1, v4
            v_lshl_add_u32 v24, v24, 3, v22
            v_and_b32 v25, 2, v4
            v_lshl_add_u32 v24, v25, 5, v24""")
            k.ds("e", "ds_read_b64 v[26:27], v24 offset:128")
            stamp(8)
            for _ in range(cfg.P1): wsp_next(fdma)
        if ci == 2 and ks == cfg.zstpos: zst_load()
        if ci == 3 and ks == 0:
            stamp(9)
            lc1, lc2 = k.label("z"), k.label("z")
            k.wait(vm="zl")
            k(f"""s_mov_b32 s56, 0
            {lc1}:
            v_max3_u32 v25, v{ZL+1}, v{ZL+3}, v{ZL+5}
            v_max3_u32 v25, v25, v{ZL+7}, v{ZL+9}
            v_max3_u32 v25, v25, v{ZL+11}, v{ZL+13}
            v_max_u32 v25, v25, v{ZL+15}
            v_cmp_eq_u32 vcc, -1, v25
            s_cbranch_vccz {lc2}
            s_add_u32 s56, s56, 1
            s_cmp_gt_u32 s56, 0x8000
            s_cbranch_scc1 {lc2}""")
            sv = list(k.vq); zst_load(); k.vq[:] = sv
            k(f"s_waitcnt vmcnt(0)\ns_branch {lc1}\n{lc2}:")
            for p in range(2):
                k(pk("add", ZL+2*p, ZL+2*p, ZL+4+2*p)); k(pk("add", ZL+8+2*p, ZL+8+2*p, ZL+12+2*p))
            for p in range(2): k(pk("add", ZL+2*p, ZL+2*p, ZL+8+2*p))
            k.wait(lg="e")
            k(pk("mul", 26, 26, 26))
            for rot in (4, 8):
                for q in range(4):
                    k(f"v_add_f32_dpp v{ZL+q}, v{ZL+q}, v{ZL+q} row_ror:{rot} row_mask:0xf bank_mask:0xf")
            k("v_rcp_f32 v26, v26\nv_rcp_f32 v27, v27")
            for e in range(2):
                k(f"v_mul_f32 v{ZL+2*e}, {fl(-1/2304)}, v{ZL+2*e}")
                k(f"v_mul_f32 v{ZL+2*e+1}, {fl(1/2304)}, v{ZL+2*e+1}")
            for e in range(2):
                k(f"v_fma_f32 v{ZL+2*e+1}, -v{ZL+2*e}, v{ZL+2*e}, v{ZL+2*e+1}")
            for e in range(2):
                k(f"v_fmamk_f32 v{ZL+2*e+1}, v{26+e}, {fl(EPS)}, v{ZL+2*e+1}")
            for e in range(2): k(f"v_rsq_f32 v{ZL+2*e+1}, v{ZL+2*e+1}")
            k(f"""s_lshl_b32 s48, {sFB}, 4
            s_add_u32 s48, s48, {sR}
            s_mul_i32 s48, s48, {SLOT}
            s_add_u32 s48, s48, s61
            s_add_u32 s48, s48, {ZF}
            v_add_u32 v25, s61, v6""")
            for e in range(2): k(f"v_mul_f32 v{ZL+2*e}, v{ZL+2*e}, v{ZL+2*e+1}")
            for jt in range(2):
                for rr in range(4):
                    b = 2*jt + (rr >> 1); e = rr & 1
                    k(f"v_mov_b32_dpp v{RHO+4*jt+rr}, v{ZL+2*e+1} quad_perm:[{b},{b},{b},{b}] row_mask:0xf bank_mask:0xf")
            for jt in range(2):
                for rr in range(4):
                    b = 2*jt + (rr >> 1); e = rr & 1
                    k(f"v_mov_b32_dpp v{NMR+4*jt+rr}, v{ZL+2*e} quad_perm:[{b},{b},{b},{b}] row_mask:0xf bank_mask:0xf")
            k("s_barrier")
            for ft in range(9):
                t = 28 + 4*(ft & 1)
                for jt in range(2):
                    for p in range(2):
                        R = acc2(ft, jt) + 2*p
                        k(pk("fma", R, R, RHO+4*jt+2*p, NMR+4*jt+2*p))
                if ft >= 2: k.wait(lg=("zw", ft-2))
                for jt in range(2):
                    for p in range(2):
                        R = acc2(ft, jt) + 2*p
                        k(f"v_cvt_pk_bf16_f32 v{t+2*jt+p}, v{R}, v{R+1}")
                k.vm("z2", f"buffer_store_dwordx4 {v(t, 4)}, {VOFF[ft//4]}, {WL}, s48 offen offset:{(ft % 4)*KB} sc1")
                k.ds(("zw", ft), f"ds_write_b128 v25, {v(t, 4)} offset:{ft*KB}")
            stamp(10)
        if ci == 3 and ks == cfg.sigpos:
            lq = k.label("s")
            k.wait(vm="z2")
            k(f"""s_barrier
            s_cmp_lg_u32 {sW}, 0
            s_cbranch_scc1 {lq}
            s_mul_i32 s48, {sFB}, {CL}
            s_add_u32 s48, s48, {CNT + C_S4*CL}
            v_mov_b32 v24, 0""")
            signal("s48", 1, 24, 25)
            k(f"{lq}:")
        k.wait(lg=("r", si))
        fr = Fill()
        if si + 1 < len(steps):
            for q in range(len(chunks[steps[si+1][0]][1])): fr.add(1, lambda q=q: wread(si+1, q))
        fx = Fill()
        if ci == 0 and ks + 4 < 18:
            for jt in range(2): fx.add(1, lambda jt=jt: xload(ks+4, jt))
        if ci == 3 and ks >= 1:
            pool.extend([X(ks-1, 0), X(ks-1, 1)])
            for _ in range(2):
                if wst["n"] < cfg.P2: wsp_next(fdma)
        mf = []
        for jt in range(2):
            for q, ft in enumerate(tl):
                if part == "z2":
                    d = v(acc2(ft, jt), 4); mf.append(MF(d, X(ks, jt), wbuf(si, q), d if ks else "0"))
                else:
                    d = v(acc1(ft, jt), 4); mf.append(MF(d, wbuf(si, q), X(ks, jt), d if ks else "0"))
        fd = Fill()
        if not (ci == 0 and ks < 14):
            fd.q = fdma.q[:4]; del fdma.q[:4]
        weave(k, mf, [fr, fx, fd, fval])
        fr.flush(); fx.flush()
        fdma.q[0:0] = fd.q
    pool.extend([X(17, 0), X(17, 1)])
    stamp(11)
    fdma.flush()
    stop(3)
    lq = k.label("s")
    k(f"""s_cmp_lg_u32 {sW}, 1
    s_cbranch_scc1 {lq}
    s_mul_i32 s48, {sFB}, {CL}
    s_add_u32 s48, s48, {CNT + C_S4*CL}
    v_mov_b32 v24, 0""")
    poll("s48", 1, 24, 25, 16)
    k(f"{lq}:")
    k.wait(lg="all")
    k("s_barrier")
    stamp(12)

    AF = 180
    af = lambda ks, i: v(AF + (ks % 2)*36 + i*4, 4)
    k(f"""s_mul_i32 s73, {sFB}, {16*SLOT}
    s_add_u32 s73, s73, s61
    s_add_u32 s73, s73, {ZF}
    s_lshl_b32 s75, {sG}, 2
    s_add_u32 s75, s75, {sW}
    s_mul_i32 s75, s75, {18*4*KB}
    s_add_u32 s75, s75, {WOF}
    s_lshr_b32 s76, {sG}, 1
    s_lshl_b32 s76, s76, 2
    s_add_u32 s76, s76, {sW}
    s_mul_i32 s76, s76, {18*KB}
    s_add_u32 s76, s76, {WOX}
    v_lshlrev_b32 v20, 4, v5
    v_add_u32 v20, {L_CS + 576}, v20""")

    def zdma(st, fill):
        pre = f"s_add_u32 s74, {sR}, {st}\ns_and_b32 s74, s74, 15\ns_mul_i32 s74, s74, {SLOT}\ns_add_u32 s74, s74, s73"
        if fill is None: k(pre)
        else: fill.txt(k, pre)
        dma_run(("z", st), WL, "s74", 0, "s61", ((st+1) % 4)*SLOT, 9, fill=fill, aux="sc1")

    def zread(ks, i):
        st = ks // 4
        k.ds(("r", ks), f"ds_read_b128 {af(ks, i)}, {LB[(st+1) % 4]} offset:{(ks % 4)*9*KB + i*KB}")

    woreg = {}
    wos = {"n": 0}

    def wo_next(fill, reg=None):
        m = wos["n"]; wos["n"] += 1
        n, c = divmod(m, 5)
        if c == 0 and n % 3 == 0: fill.add(1, lambda: k(f"s_add_u32 s77, s75, {n*4*KB}"))
        if c == 4 and n % 12 == 0: fill.add(1, lambda: k(f"s_add_u32 s78, s76, {n*KB}"))
        def go():
            woreg[m] = reg or pool.pop(0)
            if c < 4: t = f"{VOFF[n % 3]}, {WS}, s77 offen offset:{c*KB}"
            else: t = f"{VOFF[(n % 12)//4]}, {WS}, s78 offen offset:{(n % 4)*KB}"
            k.vm(("o", n), f"buffer_load_dwordx4 {woreg[m]}, {t}")
        fill.add(1, go)

    zdma(1, None)
    for i in range(9): zread(0, i)
    quads1 = [(ft, jt) for ft in range(9) for jt in range(2)]
    CS1, GT1 = [24, 28], 32
    fval = Fill()
    for qi, (ft, jt) in enumerate(quads1):
        c = CS1[ft & 1]
        R = acc1(ft, jt)
        if qi < cfg.GZ:
            if jt == 0:
                k.ds("c1", f"ds_read_b128 {v(c, 4)}, v20 offset:{ft*64}"); k.wait(lg="c1")
            gelu_pk(R, lambda p: ("b", 10+jt), lambda p: c+2*p, lambda p: ("b", 12+jt), lambda p: ("b", 14+jt), None, GT1)
        else:
            if jt == 0 and (qi == cfg.GZ or qi == cfg.GZ + 1 or True):
                fval.add(1, lambda c=c, ft=ft: k.ds("c1", f"ds_read_b128 {v(c, 4)}, v20 offset:{ft*64}"))
                fval.add(1, lambda: k.wait(lg="c1"))
            gelu_scalar(fval, [R+i for i in range(4)], [10+jt]*4, [c+i for i in range(4)], [12+jt]*4, [14+jt]*4, None, GT1)
    fz = Fill()
    zdma(2, fz)
    fw = Fill()
    LEAD = 8
    P0 = wst["n"]
    nval = len(fval.q)
    for ks in range(64):
        st = ks // 4
        k.wait(lg=("r", ks))
        if ks % 4 == 3:
            if st + 1 < 16:
                fz.flush()
                k.wait(vm=("z", st+1))
                k("s_barrier")
            if st + 3 < 16: zdma(st+3, fz)
        k.wait(vm=[("s", 2*ks), ("s", 2*ks+1)])
        fr = Fill()
        if ks + 1 < 64:
            for i in range(9): fr.add(1, lambda i=i: zread(ks+1, i))
        last = 64 - LEAD//2
        tgt = max(min(128, P0 + ((128 - P0)*(ks+1) + last - 1)//last), min(128, 2*ks + 2 + LEAD))
        avail = len(pool)
        while wst["n"] < tgt and avail > 0:
            wsp_next(fw); avail -= 1
        assert wst["n"] >= min(128, 2*ks + 4)
        tgo = min(cfg.NWO, (cfg.NWO*(ks+1) + 59)//60)
        nn = 0
        while wos["n"] < tgo and avail > (2 if wst["n"] < 128 else 0) and nn < 3:
            wo_next(fw); avail -= 1; nn += 1
        fz1 = Fill(); fz1.q = fz.q[:6]; del fz.q[:6]
        fv1 = Fill(); nv = -(-nval // 56); fv1.q = fval.q[:nv]; del fval.q[:nv]
        mf = []
        for jt in range(2):
            for i in range(9):
                d = v(acc2(i, jt), 4)
                mf.append(MF(d, af(ks, i), wreg[2*ks+jt], d if ks else "0"))
        for n, m in enumerate(mf):
            k(m)
            left = 2
            if fr.q: fr.q.pop(0)[1](); left -= 1
            elif fz1.q or fw.q:
                f = fz1 if (fz1.q and (n % 2 or not fw.q)) else fw
                f.q.pop(0)[1](); left -= 1
                if len(fz1.q) + len(fw.q) > 17 - n and (fz1.q or fw.q):
                    f = fz1 if fz1.q else fw
                    f.q.pop(0)[1](); left -= 1
            while left > 0 and fv1.q and fv1.q[0][0] <= left:
                c, fn = fv1.q.pop(0); fn(); left -= c
        fw.flush()
        fz.q[0:0] = fz1.q
        fval.q[0:0] = fv1.q
        pool.extend([wreg[2*ks], wreg[2*ks+1]])
    fval.flush()
    stamp(13)
    k(f"""s_lshl_b32 s48, {sR}, 3
    s_lshl_b32 s49, {sW}, 1
    s_add_u32 s48, s48, s49
    s_mul_i32 s48, s48, {72*KB}
    s_lshr_b32 s49, {sFB}, 2
    s_mul_i32 s49, s49, {18*KB}
    s_add_u32 s48, s48, s49
    s_add_u32 s48, s48, {UUF}
    s_and_b32 s49, {sFB}, 3
    s_lshl_b32 s50, s49, 9
    s_add_u32 s50, s50, {16*KB}
    s_add_u32 s50, s50, s48
    s_lshl_b32 s49, s49, 12
    s_add_u32 s48, s48, s49
    v_lshlrev_b32 v20, 3, v0""")
    n = 0
    for jt in range(2):
        for p in range(5):
            t = 24 + 4*(n % 3); n += 1
            for hf in range(2 if p < 4 else 1):
                ft = 2*p + hf
                for q in range(2):
                    R = acc2(ft, jt) + 2*q
                    k(pk("fma", R, R, ("b", 16+jt), ("b", 18+jt)))
                for q in range(2):
                    R = acc2(ft, jt) + 2*q
                    k(pk("mul", R, R, acc1(ft, jt) + 2*q))
                for q in range(2):
                    R = acc2(ft, jt) + 2*q
                    k(f"v_cvt_pk_bf16_f32 v{t+2*hf+q}, v{R}, v{R+1}")
            if p < 4: k.vm("u", f"buffer_store_dwordx4 {v(t, 4)}, v1, {WL}, s48 offen offset:{p*KB} sc1")
            else: k.vm("u", f"buffer_store_dwordx2 {v(t, 2)}, v20, {WL}, s50 offen sc1")
        if jt == 0: k(f"s_add_u32 s48, s48, {72*KB}\ns_add_u32 s50, s50, {72*KB}")
    stamp(14)
    pool.extend([v(108 + 4*i, 4) for i in range(37)])
    fw = Fill()
    half = wos["n"] + (90 - wos["n"]) * 2 // 3
    while wos["n"] < half: wo_next(fw)
    fw.flush()
    k(f"""s_and_b32 s48, {sG}, 1
    s_lshl_b32 s48, s48, 1
    s_lshl_b32 s49, {sHB}, 2
    s_mul_i32 s50, {sW}, {18*KB}
    s_add_u32 s50, s50, {UUF}""")
    for tt in range(4):
        k(f"""s_add_u32 s51, s48, {tt}
        s_and_b32 s51, s51, 3
        s_add_u32 s51, s51, s49
        s_mul_i32 s51, s51, {72*KB}
        s_add_u32 s{80+tt}, s51, s50""")
    k.wait(vm="u")
    lq = k.label("s")
    k(f"""s_barrier
    s_cmp_lg_u32 {sW}, 0
    s_cbranch_scc1 {lq}
    s_mul_i32 s51, {sR}, {CL}
    s_add_u32 s51, s51, {CNT + C_S5*CL}
    v_mov_b32 v24, 0""")
    signal("s51", 1, 24, 25)
    k(f"{lq}:")
    stamp(15)
    stop(4)
    while wos["n"] < 90: wo_next(fw)
    fw.flush()
    k(f"""s_add_u32 s51, s48, {sW}
    s_and_b32 s51, s51, 3
    s_add_u32 s84, s51, s49
    s_mul_i32 s52, s84, {18*KB}
    s_add_u32 s52, s52, {XF}
    s_lshl_b32 s53, {sG}, 11
    s_add_u32 s53, s53, s52
    s_lshr_b32 s54, {sG}, 1
    s_lshl_b32 s54, s54, 9
    s_add_u32 s54, s54, {16*KB}
    s_add_u32 s54, s54, s52
    v_lshrrev_b32 v21, 1, v5
    v_lshlrev_b32 v21, 8, v21
    v_lshl_add_u32 v21, v4, 4, v21
    v_and_b32 v22, 1, v5
    v_lshl_add_u32 v21, v22, 3, v21""")
    k.vm("res", f"buffer_load_dwordx4 v[12:15], v1, {WL}, s53 offen sc1")
    k.vm("res", f"buffer_load_dwordx4 v[16:19], v1, {WL}, s53 offen offset:1024 sc1")
    k.vm("res", f"buffer_load_dwordx2 v[10:11], v21, {WL}, s54 offen sc1")
    lq = k.label("s")
    k(f"""s_cmp_lg_u32 {sW}, 1
    s_cbranch_scc1 {lq}
    s_mul_i32 s51, {sRA}, {CL}
    s_add_u32 s51, s51, {CNT + C_S5*CL}
    v_mov_b32 v24, 0""")
    poll("s51", 1, 24, 25, 16)
    k(f"{lq}:\ns_barrier")
    stamp(16)

    ureg = {}

    def uload(n, tt):
        r = ureg[(n, tt)] = pool.pop(0)
        if n == 12: k(f"s_add_u32 s{80+tt}, s{80+tt}, {12*KB}")
        if n < 16:
            k.vm(("u", n), f"buffer_load_dwordx4 {r}, {VOFF[(n % 12)//4]}, {WL}, s{80+tt} offen offset:{(n % 4)*KB} sc1")
        else:
            kind, b = r[0], int(r[2:r.index(":")])
            for hf in range(2):
                k.vm(("u", n), f"buffer_load_dwordx2 {kind}[{b+2*hf}:{b+2*hf+1}], v22, {WL}, s{80+tt} offen offset:{(n-16)*KB + hf*512} sc1")

    k("v_add_u32 v22, 4096, v20")
    nxt = [(n, tt) for n in range(18) for tt in range(4)]
    for _ in range(min(11, len(pool))): uload(*nxt.pop(0))
    for n in range(18):
        k.wait(vm=[("u", n), ("o", n)])
        f = Fill()
        cnt = 0
        while nxt and cnt < min(len(pool), 5) and nxt[0][0] <= n + 3:
            x = nxt.pop(0); f.add(1, lambda x=x: uload(*x)); cnt += 1
        mf = []
        for tt in range(4):
            for c in range(4):
                d = v(36 + (tt*4+c)*4, 4)
                mf.append(MF(d, woreg[5*n+c], ureg[(n, tt)], d if n else "0"))
            if tt < 2:
                d = v(100 + tt*4, 4)
                mf.append(MF(d, woreg[5*n+4], ureg[(n, tt)], d if n else "0"))
        for i, m in enumerate(mf):
            k(m)
            if i % 3 == 1 and f.q: f.q.pop(0)[1]()
        f.flush()
        pool.extend([woreg[5*n+c] for c in range(5)] + [ureg[(n, tt)] for tt in range(4)])
    stamp(17)
    k(f"""s_mul_i32 s48, {sW}, {18*KB}
    v_add_u32 v20, s48, v1
    s_lshl_b32 s48, {sW}, 12
    v_add_u32 v21, s48, v1
    s_lshl_b32 s48, {sW}, 10
    s_add_u32 s48, s48, {16*KB}
    v_add_u32 v22, s48, v1""")
    for q in range(18): k(f"ds_write_b128 v20, {v(36+4*q, 4)} offset:{q*KB}")
    k(f"""s_and_b32 s48, s84, 7
    s_lshl_b32 s48, s48, 4
    s_add_u32 s48, s48, {sRA}
    s_mul_i32 s48, s48, 1152
    s_lshl_b32 s49, {sG}, 7
    s_add_u32 s49, s49, s48
    s_lshr_b32 s50, {sG}, 1
    s_lshl_b32 s50, s50, 5
    s_add_u32 s50, s50, 1024
    s_add_u32 s50, s50, s48
    v_mul_u32_u24 v24, 147456, v4
    v_lshl_add_u32 v23, v5, 4, v24
    v_lshl_add_u32 v24, v5, 3, v24""")
    k.wait(vm="res")
    for hh in range(2):
        for q in range(4):
            rr, c = 2*hh + (q >> 1), 2*(q & 1)
            k(f"v_lshlrev_b32 v{108+4*c+rr}, 16, v{12+4*hh+q}")
            k(f"v_and_b32 v{108+4*(c+1)+rr}, 0xffff0000, v{12+4*hh+q}")
    for q in range(2):
        k(f"v_lshlrev_b32 v{124+2*q}, 16, v{10+q}")
        k(f"v_and_b32 v{125+2*q}, 0xffff0000, v{10+q}")
    k("s_waitcnt lgkmcnt(0)\ns_barrier")
    k.lq.clear()
    for src in range(4):
        for c in range(4):
            k.ds(src, f"ds_read_b128 {v(128+src*20+4*c, 4)}, v21 offset:{src*18*KB + c*KB}")
        k.ds(src, f"ds_read_b128 {v(128+src*20+16, 4)}, v22 offset:{src*18*KB}")
        if src >= 2:
            k.wait(lg=src-2)
            for q in range(10): k(pk("add", 108+2*q, 108+2*q, 128+(src-2)*20+2*q))
    for src in (2, 3):
        k.wait(lg=src)
        for q in range(10): k(pk("add", 108+2*q, 108+2*q, 128+src*20+2*q))
    for hh in range(2):
        for q in range(4):
            rr, c = 2*hh + (q >> 1), 2*(q & 1)
            k(f"v_cvt_pk_bf16_f32 v{26+4*hh+q}, v{108+4*c+rr}, v{108+4*(c+1)+rr}")
        k(f"buffer_store_dwordx4 {v(26+4*hh, 4)}, v23, {XOUT}, s49 offen offset:{hh*64} sc1")
    lq = k.label("s")
    k(f"""s_cmp_ge_u32 {sW}, 2
    s_cbranch_scc1 {lq}
    v_cvt_pk_bf16_f32 v34, v124, v125
    v_cvt_pk_bf16_f32 v35, v126, v127
    buffer_store_dwordx2 v[34:35], v24, {XOUT}, s50 offen sc1
    {lq}:""")
    stamp(18)
    stop(5)
    k(f"""s_cmp_lg_u32 {sL}, 0
    s_cbranch_scc1 Lfin
    s_mov_b32 {sL}, 1""")
    srd(8, 44, 45, 2359296, X2)
    srd(12, 40, 41, 2359296)
    srd(20, 44, 45, LSTR, LAY0 + LSTR)
    lq = k.label("s")
    k(f"""s_cmp_lt_u32 {sG}, 6
    s_cbranch_scc1 Lhead
    s_waitcnt vmcnt(0)
    s_barrier
    s_cmp_lg_u32 {sW}, 3
    s_cbranch_scc1 {lq}
    s_mul_i32 s48, {sHB}, {CL}
    s_add_u32 s48, s48, {CNT + C_S6*CL}
    v_mov_b32 v10, 0""")
    signal("s48", 1, 10, 11)
    k(f"{lq}:\ns_branch Lprep1")
    k("Lfin:")
    if cfg.diag:
        k(f"""s_lshl_b32 s48, s2, 2
        s_add_u32 s48, s48, {sW}
        s_lshl_b32 s48, s48, 8
        s_add_u32 s48, s48, {STAMP}
        v_lshlrev_b32 v10, 2, v0
        buffer_store_dword v9, v10, {WS}, s48 offen""")
    k("s_waitcnt vmcnt(0)\nLexit:\ns_endpgm")

    body = k.text()
    head = open("interleave_layers__spectral_fnet__mixer_gmlp__prompt.s.ref").read().split("; Override")[0]
    return f"""{head}; Generated by gen/gen.py: persistent kernel, one workgroup per CU.
; @launch grid=(256,1,1) block=(256,1,1) lds={LDS_BYTES}
.amdgcn_target "amdgcn-amd-amdhsa--gfx950"
.text
.globl {NAME}
.p2align 8
.type {NAME},@function
{NAME}:
{body}.section .rodata,"a"
.p2align 6
.amdhsa_kernel {NAME}
  .amdhsa_next_free_vgpr 512
  .amdhsa_next_free_sgpr 102
  .amdhsa_accum_offset 256
  .amdhsa_group_segment_fixed_size 0
  .amdhsa_kernarg_size 104
  .amdhsa_user_sgpr_count 2
  .amdhsa_user_sgpr_kernarg_segment_ptr 1
  .amdhsa_system_sgpr_workgroup_id_x 1
  .amdhsa_float_denorm_mode_32 3
.end_amdhsa_kernel
""", k


if __name__ == "__main__":
    cfg = Cfg()
    out = "interleave_layers__spectral_fnet__mixer_gmlp__prompt.s"
    for arg in sys.argv[1:]:
        if "=" in arg:
            n, x = arg.split("="); setattr(cfg, n, int(x))
        else:
            out = arg
    text, k = build(cfg)
    open(out, "w").write(text)
    print(out, len(text), "bytes,", len(k.l), "lines,", k.nops, "pads")
```

```python
class K:
    def __init__(self):
        self.l = []
    def __call__(self, s):
        for line in s.split("\n"):
            line = line.strip()
            if line: self.l.append(("" if line.endswith(":") else "    ") + line)
    def text(self): return "\n".join(self.l) + "\n"

def v(a, n=1): return f"v{a}" if n == 1 else f"v[{a}:{a+n-1}]"
def a_(a, n=1): return f"a{a}" if n == 1 else f"a[{a}:{a+n-1}]"
def s(a, n=1): return f"s{a}" if n == 1 else f"s[{a}:{a+n-1}]"

HEAD = '.amdgcn_target "amdgcn-amd-amdhsa--gfx950"\n.text\n'
def kernel(name, body, vgpr, agpr=0, sgpr=102):
    acc = (vgpr + 3) // 4 * 4
    nfv = acc + agpr if agpr else vgpr
    t = f".text\n.globl {name}\n.p2align 8\n.type {name},@function\n{name}:\n{body}"
    d = f""".section .rodata,"a"
.p2align 6
.amdhsa_kernel {name}
  .amdhsa_next_free_vgpr {nfv}
  .amdhsa_next_free_sgpr {sgpr}
  .amdhsa_accum_offset {acc}
  .amdhsa_group_segment_fixed_size 0
  .amdhsa_kernarg_size 104
  .amdhsa_user_sgpr_count 2
  .amdhsa_user_sgpr_kernarg_segment_ptr 1
  .amdhsa_system_sgpr_workgroup_id_x 1
  .amdhsa_float_denorm_mode_32 3
.end_amdhsa_kernel
"""
    return t, d
def module(launches, kernels):
    out = ""
    for (n, g, b, lds) in launches:
        out += f"; @launch kernel={n} grid=({g},1,1) block=({b},1,1) lds={lds}\n"
    out += HEAD
    for t, d in kernels: out += t
    for t, d in kernels: out += d
    return out
```

```python
import sys
sys.path.insert(0,'exp')
from asmlib import *

ZOFF=0; WOFF=16<<20; STAMP=32<<20

def prologue(k):
    k(f"""
    s_cmp_ge_u32 s2, 256
    s_cbranch_scc1 L_end_{k.name}
    s_load_dwordx2 s[4:5], s[0:1], 96
    s_memrealtime s[20:21]
    s_memtime s[22:23]
    v_lshrrev_b32 v1, 6, v0
    v_and_b32 v0, 63, v0
    s_nop 0
    v_readfirstlane_b32 s6, v1
    s_and_b32 s7, s2, 7             ; xcd
    s_lshr_b32 s8, s2, 3
    s_lshr_b32 s9, s7, 1
    s_lshl_b32 s9, s9, 2
    s_and_b32 s10, s8, 3
    s_add_u32 s9, s9, s10           ; tb
    s_and_b32 s10, s7, 1
    s_lshl_b32 s10, s10, 3
    s_lshr_b32 s11, s8, 2
    s_add_u32 s10, s10, s11         ; fb
    s_waitcnt lgkmcnt(0)
    s_mov_b32 s12, s4
    s_mov_b32 s13, s5
    s_mov_b32 s14, 0x10000000
    s_mov_b32 s15, 0x00020000
    """)
def epilogue(k):
    k(f"""
    s_memrealtime s[24:25]
    s_memtime s[26:27]
    s_waitcnt lgkmcnt(0)
    s_sub_u32 s26, s26, s22
    v_mov_b32 v4, s20
    v_mov_b32 v5, s24
    v_mov_b32 v6, s26
    v_mov_b32 v7, s6
    s_lshl_b32 s28, s2, 3
    s_add_u32 s28, s28, s6
    s_lshl_b32 s28, s28, 4
    s_add_u32 s28, s28, {STAMP}
    v_mov_b32 v8, s28
    v_cmp_eq_u32 vcc, 0, v0
    s_and_saveexec_b64 s[30:31], vcc
    buffer_store_dwordx4 v[4:7], v8, s[12:15], 0 offen
    s_waitcnt vmcnt(0)
    L_end_{k.name}:
    s_endpgm
    """)

def var_a(name, do_load=True, do_mfma=True, nbuf=3, inter=True):
    k=K(); k.name=name
    prologue(k)
    kstride = 4 if inter else 1
    kstart = 1 if inter else 16
    k(f"""
    s_mul_i32 s16, s10, {64*9*1024}
    s_mul_i32 s18, s6, {kstart*9*1024}
    s_add_u32 s16, s16, s18
    s_mul_i32 s17, s9, {64*8*1024}
    s_mul_i32 s18, s6, {kstart*8*1024}
    s_add_u32 s17, s17, s18
    s_add_u32 s17, s17, {WOFF}
    v_lshlrev_b32 v1, 4, v0
    v_add_u32 v2, 4096, v1
    v_add_u32 v3, 8192, v1
    """)
    ACCV=8
    FB=40
    def accreg(i):
        return a_(i*4,4) if i<64 else v(ACCV+(i-64)*4,4)
    for i in range(256): k(f"v_accvgpr_write_b32 a{i}, 0")
    for i in range(32): k(f"v_mov_b32 v{ACCV+i}, 0")
    for i in range(nbuf*68): k(f"v_mov_b32 v{FB+i}, 0")
    def zf(b,i): return v(FB+b*68+i*4,4)
    def wf(b,j): return v(FB+b*68+36+j*4,4)
    def loads(b):
        L=[]
        for i in range(9):
            L.append(f"buffer_load_dwordx4 {zf(b,i)}, v{1+i//4}, s[12:15], s16 offen offset:{(i%4)*1024}")
        for j in range(8):
            L.append(f"buffer_load_dwordx4 {wf(b,j)}, v{1+j//4}, s[12:15], s17 offen offset:{(j%4)*1024}")
        return L
    def adv():
        return [f"s_add_u32 s16, s16, {kstride*9*1024}", f"s_add_u32 s17, s17, {kstride*8*1024}"]
    if do_load:
        for b in range(nbuf-1):
            for x in loads(b): k(x)
            for x in adv(): k(x)
    nsteps=16
    total = 16 if nbuf==2 else 15
    k(f"s_mov_b32 s19, {total//nbuf}")
    k(f"L_loop_{name}:")
    for b in range(nbuf):
        L = loads((b+nbuf-1)%nbuf) if do_load else []
        if do_load: k(f"s_waitcnt vmcnt({17*(nbuf-2)})")
        n=0
        for j in range(8):
            for i in range(9):
                if do_mfma:
                    k(f"v_mfma_f32_16x16x32_bf16 {accreg(j*9+i)}, {zf(b,i)}, {wf(b,j)}, {accreg(j*9+i)}")
                n+=1
                if n%4==1 and L: k(L.pop(0))
        for x in L: k(x)
        if do_load:
            for x in adv(): k(x)
    k(f"""
    s_sub_u32 s19, s19, 1
    s_cmp_lg_u32 s19, 0
    s_cbranch_scc1 L_loop_{name}
    s_waitcnt vmcnt(0)
    s_nop 15
    """)
    epilogue(k)
    return kernel(name, k.text(), 256, 256)

def empty(name):
    k=K(); k.name=name
    prologue(k); epilogue(k)
    return kernel(name,k.text(),32)

if __name__=="__main__":
    for nm,kw in [("a3",dict()),("a3l",dict(do_mfma=False)),("a3m",dict(do_load=False)),("a2",dict(nbuf=2)),("a3b",dict(inter=False))]:
        n=nm+"_kernel"
        open(f"t/{nm}.s","w").write(module([(n,256,256,0)],[var_a(n,**kw)]))
    for c in [1,2,4,8,16]:
        open(f"empty{c}.s","w").write(module([("e_kernel",256,256,0)]*c,[empty("e_kernel")]))
```

```python
import sys
sys.path.insert(0,'exp')
from asmlib import *
from e1_gen import prologue, STAMP
def mk(name, n):
    k=K(); k.name=name
    prologue(k)
    k(f"""s_mul_i32 s40, s2, {n*4096}
    s_mul_i32 s18, s6, {n*1024}
    s_add_u32 s40, s40, s18
    s_add_u32 s40, s40, {64<<20}
    v_lshlrev_b32 v1, 4, v0
    v_lshlrev_b32 v2, 20, v0
    v_mov_b32 v3, 0
    s_mov_b32 s41, {(64<<20)-128}
    buffer_atomic_add v3, v2, s[12:15], s41 offen sc1
    s_waitcnt vmcnt(0)
    s_sleep 60""")
    for p in range(3):
        k(f"s_barrier\ns_memrealtime s[{44+4*p}:{45+4*p}]\ns_mov_b32 s16, s40")
        for i in range(n): k(f"buffer_store_dwordx4 v[4:7], v1, s[12:15], s16 offen sc1\ns_add_u32 s16, s16, 1024")
        k(f"s_waitcnt vmcnt(0)\ns_barrier\ns_memrealtime s[{46+4*p}:{47+4*p}]\ns_sleep 60")
    k(f"""s_waitcnt lgkmcnt(0)
    s_sub_u32 s46, s46, s44
    s_sub_u32 s50, s50, s48
    s_sub_u32 s54, s54, s52
    v_mov_b32 v4, s46
    v_mov_b32 v5, s50
    v_mov_b32 v6, s54
    s_lshl_b32 s28, s2, 4
    s_add_u32 s28, s28, {STAMP}
    v_mov_b32 v8, s28
    buffer_store_dwordx4 v[4:7], v8, s[12:15], 0 offen
    s_waitcnt vmcnt(0)
    L_end_{k.name}:
    s_endpgm""")
    return kernel(name,k.text(),128)
if __name__=="__main__":
    ks=[];ls=[]
    for n in [1,2,4,9]:
        name=f"w_{n}_kernel"; ks.append(mk(name,n)); ls.append((name,256,256,160*1024))
    open(f"e18.s","w").write(module(ls,ks))
```
